```python
import torch

def _softmax(x, axis=-1):
    return torch.softmax(x, dim=axis)
def _gelu(x):
    return torch.nn.functional.gelu(x, approximate="tanh")
def _silu(x):
    return torch.nn.functional.silu(x)
def _sigmoid(x):
    return torch.sigmoid(x)
def _layernorm(x, axis=-1, eps=1e-5):
    m = x.mean(dim=axis, keepdim=True)
    v = x.var(dim=axis, keepdim=True, unbiased=False)
    return (x - m) / torch.sqrt(v + eps)
def _scatter_add(tgt, idx, src, axis=0):
    return tgt.clone().index_add_(axis, idx, src)
def _segment_sum(src, seg, n):
    out = torch.zeros((n,) + src.shape[1:], dtype=src.dtype)
    return out.index_add_(0, seg, src)
def _pad(x, pw):
    flat = tuple(v for pair in reversed(pw) for v in pair)
    return torch.nn.functional.pad(x, flat)

kernel_name = 'standalone__dense_activation_silu__prompt'

def setup_inputs():

    _w = (lambda a: (lambda t: t.to(torch.bfloat16) if t.is_floating_point() else t)(torch.as_tensor(a)))
    B, S, D, F = 1, 2048, 576, 4608
    return {
        "x": _w((lambda *s: torch.randn(*s, dtype=torch.bfloat16) * 0.1)(B, S, D)),
        "w1": _w((lambda *s: torch.randn(*s, dtype=torch.bfloat16) * 3.2)(D, F) * (D ** -0.5)),
        "w2": _w((lambda *s: torch.randn(*s, dtype=torch.bfloat16) * 3.2)(F, D) * (F ** -0.5)),
    }

def reference(x, w1, w2):
    h = torch.einsum("bsd,df->bsf", x, w1)
    h = _silu(h)
    out = torch.einsum("bsf,fd->bsd", h, w2)
    return out
```

```python
import sys

MODE = sys.argv[1] if len(sys.argv) > 1 else 'full'
KNAME = "standalone__dense_activation_silu__prompt_kernel"

P1_SLOT = 53248
P1_X = 0
P1_W = 16384
P2_B = 0
P2_BS = 9216
P2_A = 82944
P2_AS = 8192
LDS_BYTES = 163840
HBLK = 73728
PART = 32 * 1024 * 1024
PQ = 18432
X_BYTES, W_BYTES, OUT_BYTES, WS_BYTES = 2359296, 5308416, 2359296, 268435456
R3_X = 0
R3_O = 4 * 18432
SPIN_MAX = 400000

out = []
def e(s): out.append("  " + s)
def lab(s): out.append(s + ":")

sX, sW1, sW2, sOUT, sDBG, sWS = "s[16:19]", "s[20:23]", "s[24:27]", "s[28:31]", "s[32:35]", "s[36:39]"
S_MT, S_KQ, S_NQ, S_WAVE, S_ROT1, S_ROT2, S_FS = 40, 41, 42, 43, 44, 45, 46

V_LANE = 0
V_TRE, V_TRO, V_TR8, V_X0, V_X1 = 2, 3, 4, 5, 6
V_HLO, V_HHI, V_T2 = 7, 8, 9
V_L16 = 10
WB = 16
XB = 52
TMP = 84
ACC = 112
def acc(t, mi): return ACC + (t * 4 + mi) * 4
def wb(t): return WB + t * 4
def xb(par, mi): return XB + (par * 4 + mi) * 4
def vr(b, n): return "v[%d:%d]" % (b, b + n - 1)

out.append("; @launch grid=(256,1,1) block=(512,1,1) lds=%d" % LDS_BYTES)
out.append('.amdgcn_target "amdgcn-amd-amdhsa--gfx950"')
out.append(".text")
out.append(".globl %s" % KNAME)
out.append(".p2align 8")
out.append(".type %s,@function" % KNAME)
lab(KNAME)
e("s_cmp_ge_u32 s2, 256")
e("s_cbranch_scc1 L_end")
e("s_load_dwordx4 s[4:7], s[0:1], 0")
e("s_load_dwordx4 s[8:11], s[0:1], 16")
e("s_load_dwordx4 s[12:15], s[0:1], 32")
e("v_lshrrev_b32 v1, 6, v0")
e("v_and_b32 v0, 63, v0")
e("s_and_b32 s47, s2, 7")
e("v_readfirstlane_b32 s%d, v1" % S_WAVE)
e("s_lshr_b32 s48, s2, 3")
e("s_lshr_b32 s%d, s47, 1" % S_KQ)
e("s_and_b32 s49, s47, 1")
e("s_lshl_b32 s49, s49, 3")
e("s_and_b32 s%d, s48, 7" % S_ROT2)
e("s_add_u32 s%d, s49, s%d" % (S_MT, S_ROT2))
e("s_lshr_b32 s%d, s48, 3" % S_NQ)
e("s_lshl_b32 s%d, s%d, 2" % (S_FS, S_KQ))
e("s_add_u32 s%d, s%d, s%d" % (S_FS, S_FS, S_NQ))
e("s_lshl_b32 s%d, s%d, 1" % (S_ROT1, S_NQ))
e("s_add_u32 s%d, s%d, s%d" % (S_ROT1, S_ROT1, S_ROT2))
e("s_cmp_ge_u32 s%d, 9" % S_ROT1)
e("s_cselect_b32 s47, 9, 0")
e("s_sub_u32 s%d, s%d, s47" % (S_ROT1, S_ROT1))
e("v_lshlrev_b32 v%d, 4, v0" % V_L16)
e("s_waitcnt lgkmcnt(0)")
for (base, p, n) in ((16, 4, X_BYTES), (20, 6, W_BYTES), (24, 8, W_BYTES), (28, 10, OUT_BYTES), (32, 12, 256), (36, 14, WS_BYTES)):
    e("s_mov_b32 s%d, s%d" % (base, p))
    e("s_and_b32 s%d, s%d, 0xffff" % (base + 1, p + 1))
    e("s_mov_b32 s%d, %d" % (base + 2, n))
    e("s_mov_b32 s%d, 0x20000" % (base + 3))
e("s_cmp_ge_u32 s%d, 4" % S_WAVE)
e("s_cbranch_scc1 L_loader")

S_MH, S_FH = 50, 51
e("s_lshr_b32 s%d, s%d, 1" % (S_MH, S_WAVE))
e("s_and_b32 s%d, s%d, 1" % (S_FH, S_WAVE))
e("v_lshrrev_b32 v11, 4, v0")
e("v_bfe_u32 v12, v0, 2, 2")
e("v_and_b32 v13, 3, v0")
e("v_and_b32 v14, 1, v11")
e("v_and_b32 v15, 15, v0")
e("v_lshl_add_u32 v16, v11, 3, v12")
e("v_mul_u32_u24 v16, 576, v16")
e("v_lshl_add_u32 v16, v13, 3, v16")
e("v_lshlrev_b32 v17, 5, v14")
e("s_mul_i32 s52, s%d, 320" % S_FH)
e("s_add_u32 s52, s52, %d" % P1_W)
e("v_add_u32 v18, s52, v16")
e("v_add_u32 v%d, v18, v17" % V_TRE)
e("v_sub_u32 v%d, v18, v17" % V_TRO)
e("s_lshl_b32 s52, s%d, 5" % S_FH)
e("s_add_u32 s52, s52, %d" % (P1_W + 256))
e("s_lshl_b32 s53, s%d, 1" % S_FH)
e("s_sub_u32 s53, 1, s53")
e("v_mul_lo_u32 v18, v17, s53")
e("v_add3_u32 v%d, v16, v18, s52" % V_TR8)
e("v_lshrrev_b32 v17, 1, v15")
e("v_xor_b32 v18, v11, v17")
e("v_xor_b32 v19, 4, v18")
e("s_lshl_b32 s52, s%d, 13" % S_MH)
e("s_add_u32 s52, s52, %d" % P1_X)
e("v_lshlrev_b32 v20, 7, v15")
e("v_add_u32 v20, s52, v20")
e("v_lshl_add_u32 v%d, v18, 4, v20" % V_X0)
e("v_lshl_add_u32 v%d, v19, 4, v20" % V_X1)
e("v_lshl_add_u32 v16, v11, 2, v12")
e("v_mul_u32_u24 v16, 288, v16")
e("v_lshl_add_u32 v16, v13, 3, v16")
e("s_mul_i32 s52, s%d, %d" % (S_FH, P2_BS))
e("s_add_u32 s52, s52, %d" % P2_B)
e("v_add_u32 v%d, s52, v16" % V_T2)
e("s_lshl_b32 s52, s%d, 12" % S_MH)
e("s_mul_i32 s53, s%d, %d" % (S_FH, P2_AS))
e("s_add_u32 s52, s52, s53")
e("s_add_u32 s52, s52, %d" % P2_A)
e("s_lshl_b32 s53, s%d, 11" % S_FH)
e("s_add_u32 s54, s52, s53")
e("v_add_u32 v%d, s54, v%d" % (V_HLO, V_L16))
e("s_sub_u32 s54, s52, s53")
e("s_add_u32 s54, s54, 2048")
e("v_add_u32 v%d, s54, v%d" % (V_HHI, V_L16))
for i in range(144):
    e("v_mov_b32 v%d, 0" % (ACC + i))

class Seq:
    def __init__(self): self.items = []
    def i(self, t): self.items.append(('i', t))
    def lds(self, t, tag): self.items.append(('lds', t, tag))
    def wait(self, tags, key): self.items.append(('wait', tags, key))
    def drain(self, t): self.items.append(('drain', t))

def w_reads_p1(t, ks, step):
    base = V_TR8 if t == 8 else (V_TRE if t % 2 == 0 else V_TRO)
    toff = 0 if t == 8 else t * 32
    r = []
    for h in range(2):
        r.append(("ds_read_b64_tr_b16 %s, v%d offset:%d" % (vr(wb(t) + 2 * h, 2), base, ks * 18432 + h * 2304 + toff), ('W', step, t)))
    return r
def x_reads_p1(ks, step):
    base = V_X0 if ks == 0 else V_X1
    return [("ds_read_b128 %s, v%d offset:%d" % (vr(xb(step & 1, mi), 4), base, mi * 2048), ('X', step)) for mi in range(4)]
def w_reads_p2(t, step):
    return [("ds_read_b64_tr_b16 %s, v%d offset:%d" % (vr(wb(t) + 2 * h, 2), V_T2, h * 4608 + t * 32), ('W', step, t)) for h in range(2)]
def x_reads_p2(step):
    r = []
    for mi in range(4):
        base = V_HLO if mi < 2 else V_HHI
        r.append(("ds_read_b128 %s, v%d offset:%d" % (vr(xb(step & 1, mi), 4), base, (mi & 1) * 1024), ('X', step)))
    return r

BAR_T = 2

def kstep(sq, keyp, step, carry, wnext, xnext, barrier=None, czero=False):
    q = list(carry)
    held = []
    blocked = barrier is not None
    if not blocked and xnext:
        pass
    for t in range(9):
        tags = [('W', step, t)] + ([('X', step)] if t == 0 else [])
        sq.wait(tags, (keyp, t))
        for mi in range(4):
            c = "0" if czero else vr(acc(t, mi), 4)
            sq.i("v_mfma_f32_16x16x32_bf16 %s, %s, %s, %s" % (vr(acc(t, mi), 4), vr(wb(t), 4), vr(xb(step & 1, mi), 4), c))
            if q and not (t == 8 and mi == 3):
                txt, tag = q.pop(0)
                sq.lds(txt, tag)
        new = wnext(t) if wnext else []
        if blocked:
            held += new
        else:
            q += new
        if t == (3 if barrier is None else BAR_T) and xnext and barrier is None:
            q += xnext
        if barrier is not None and t == BAR_T:
            assert not q, "carry not drained before barrier"
            sq.drain("s_waitcnt lgkmcnt(0)")
            for b in barrier: sq.i(b)
            blocked = False
            q += (xnext or []) + held
            held = []
    return q

def resolve(seqs):
    issued = []
    res = {}
    for sq in seqs:
        for it in sq.items:
            if it[0] == 'lds':
                issued.append(it[2])
            elif it[0] == 'drain':
                issued = []
            elif it[0] == 'wait':
                tags = it[1]
                last = -1
                for idx, tg in enumerate(issued):
                    if tg in tags: last = idx
                n = 15 if last < 0 else min(15, len(issued) - 1 - last)
                res[it[2]] = min(res.get(it[2], 15), n)
    return res

def emit(sq, res):
    for it in sq.items:
        if it[0] in ('i', 'drain'): e(it[1])
        elif it[0] == 'lds': e(it[1])
        else: e("s_waitcnt lgkmcnt(%d)" % res[it[2]])

NBAR = {'c': 0}
def cbar(): NBAR['c'] += 1

S_SLOT, S_DELTA, S_CNT = 55, 56, 57
adv1 = ["s_barrier",
        "s_add_u32 s%d, s%d, 1" % (S_SLOT, S_SLOT),
        "s_cmp_eq_u32 s%d, 3" % S_SLOT,
        "s_cselect_b32 s%d, s71, s70" % S_DELTA,
        "s_cselect_b32 s%d, 0, s%d" % (S_SLOT, S_SLOT)] + \
       ["v_add_u32 v%d, s%d, v%d" % (r, S_DELTA, r) for r in (V_TRE, V_TRO, V_TR8, V_X0, V_X1)]

def p1_stage(j, keyp, carry, last):
    sq = Seq()
    s0, s1 = 2 * j, 2 * j + 1
    c = kstep(sq, (keyp, 0), s0, carry, lambda t: w_reads_p1(t, 1, s1), x_reads_p1(1, s1))
    if not last:
        c = kstep(sq, (keyp, 1), s1, c, lambda t: w_reads_p1(t, 0, s1 + 1), x_reads_p1(0, s1 + 1), barrier=adv1)
    else:
        c = kstep(sq, (keyp, 1), s1, c, None, None, barrier=["s_barrier"])
    return sq, c

pro = Seq()
pro.i("s_mov_b32 s%d, 0" % S_SLOT)
pro.i("s_mov_b32 s%d, 8" % S_CNT)
pro.i("s_mov_b32 s70, %d" % P1_SLOT)
pro.i("s_mov_b32 s71, %d" % ((-2 * P1_SLOT) & 0xffffffff))
pro.i("s_mov_b32 s72, %d" % (2 * P2_AS))
pro.i("s_mov_b32 s73, %d" % ((-7 * P2_AS) & 0xffffffff))
pro.i("s_mov_b32 s74, %d" % (2 * P2_BS))
pro.i("s_mov_b32 s75, %d" % ((-7 * P2_BS) & 0xffffffff))
pro.i("s_barrier")
for (txt, tag) in x_reads_p1(0, 0): pro.lds(txt, tag)
for t in range(8):
    for (txt, tag) in w_reads_p1(t, 0, 0): pro.lds(txt, tag)
carry0 = w_reads_p1(8, 0, 0)
seqs = [pro]
c = carry0
for j in range(8):
    sq, c = p1_stage(j, 'P1L', c, False)
    assert [x[0] for x in c] == [x[0] for x in carry0], (c, carry0)
    seqs.append(sq)
sq_last, c = p1_stage(8, 'P1T', c, True)
assert not c
seqs.append(sq_last)
res = resolve(seqs)
emit(pro, res)
lab("L_p1_loop")
emit(seqs[1], res)
e("s_sub_u32 s%d, s%d, 1" % (S_CNT, S_CNT))
e("s_cmp_lg_u32 s%d, 0" % S_CNT)
e("s_cbranch_scc1 L_p1_loop")
emit(sq_last, res)
NBAR['c'] += 1 + 8 + 1

S_SO = 60
S_GB = 65
for p in range(5):
    if p < 4:
        e("s_mul_i32 s52, s%d, 5" % S_FH)
        e("s_add_u32 s52, s52, %d" % (p + 9))
    else:
        e("s_mov_b32 s52, %d" % (4 + 9))
    e("s_sub_u32 s52, s52, s%d" % S_ROT2)
    e("s_cmp_ge_u32 s52, 9")
    e("s_cselect_b32 s53, 9, 0")
    e("s_sub_u32 s52, s52, s53")
    e("s_lshl_b32 s52, s52, 13")
    e("s_lshl_b32 s53, s%d, 12" % S_MH)
    e("s_add_u32 s%d, s52, s53" % (S_SO + p))
e("s_lshl_b32 s52, s%d, 3" % S_FH)
e("s_add_u32 s%d, s%d, s52" % (S_SO + 4, S_SO + 4))
e("s_lshl_b32 s52, s%d, 4" % S_MT)
e("s_add_u32 s52, s52, s%d" % S_FS)
e("s_mul_i32 s%d, s52, %d" % (S_GB, HBLK))
e("s_mov_b32 s66, 0xbfb8aa3b")
e("s_mov_b32 s67, 0xbfb8aa3b")
e("s_mov_b32 s68, 1.0")
e("s_mov_b32 s69, 1.0")

def silu_group(regs, T, P):
    n = len(regs)
    for k, a in enumerate(regs):
        for hh in range(2):
            e("v_pk_mul_f32 %s, %s, s[66:67]" % (vr(T + 4 * k + 2 * hh, 2), vr(a + 2 * hh, 2)))
    for k in range(4 * n):
        e("v_exp_f32 v%d, v%d" % (T + k, T + k))
    for k in range(2 * n):
        e("v_pk_add_f32 %s, %s, s[68:69]" % (vr(T + 2 * k, 2), vr(T + 2 * k, 2)))
    for k in range(4 * n):
        e("v_rcp_f32 v%d, v%d" % (T + k, T + k))
    for k, a in enumerate(regs):
        for hh in range(2):
            e("v_pk_mul_f32 %s, %s, %s" % (vr(T + 4 * k + 2 * hh, 2), vr(a + 2 * hh, 2), vr(T + 4 * k + 2 * hh, 2)))
    for k in range(2 * n):
        e("v_cvt_pk_bf16_f32 v%d, v%d, v%d" % (P + k, T + 2 * k, T + 2 * k + 1))

grp = 0
for p in range(5):
    e("s_add_u32 s53, s%d, %d" % (S_SO + p, P2_A))
    e("v_add_u32 v1, s53, v%d" % V_L16)
    e("s_add_u32 s52, s%d, s%d" % (S_GB, S_SO + p))
    for mi in range(4):
        T = 16 + (grp % 3) * 8
        P = 48 + (grp % 4) * 4
        grp += 1
        if p < 4:
            silu_group([acc(2 * p, mi), acc(2 * p + 1, mi)], T, P)
            e("ds_write_b128 v1, %s offset:%d" % (vr(P, 4), mi * 1024))
            e("buffer_store_dwordx4 %s, v%d, %s, s52 offen offset:%d sc1" % (vr(P, 4), V_L16, sWS, mi * 1024))
        else:
            silu_group([acc(8, mi)], T, P)
            e("ds_write_b64 v1, %s offset:%d" % (vr(P, 2), mi * 1024))
            e("buffer_store_dwordx2 %s, v%d, %s, s52 offen offset:%d sc1" % (vr(P, 2), V_L16, sWS, mi * 1024))

if MODE == 'p1':
    e("s_waitcnt vmcnt(0) lgkmcnt(0)")
    e("s_branch L_end")
else:
    S_DA, S_DB = 58, 59
    def adv2(first):
        l = []
        if first: l.append("s_waitcnt vmcnt(0)")
        l += ["s_barrier",
              "s_add_u32 s%d, s%d, 2" % (S_SLOT, S_SLOT),
              "s_cmp_ge_u32 s%d, 9" % S_SLOT,
              "s_cselect_b32 s%d, s73, s72" % S_DA,
              "s_cselect_b32 s%d, s75, s74" % S_DB,
              "s_cselect_b32 s52, 9, 0",
              "s_sub_u32 s%d, s%d, s52" % (S_SLOT, S_SLOT),
              "v_add_u32 v%d, s%d, v%d" % (V_T2, S_DB, V_T2),
              "v_add_u32 v%d, s%d, v%d" % (V_HLO, S_DA, V_HLO),
              "v_add_u32 v%d, s%d, v%d" % (V_HHI, S_DA, V_HHI)]
        return l
    def p2_stage(t, keyp, carry):
        sq = Seq()
        if t < 17:
            c = kstep(sq, keyp, t, carry, lambda tt: w_reads_p2(tt, t + 1), x_reads_p2(t + 1), barrier=adv2(t == 0), czero=(t == 0))
        else:
            c = kstep(sq, keyp, t, carry, None, None, barrier=["s_barrier"])
        return sq, c
    pro = Seq()
    pro.i("s_mov_b32 s%d, s%d" % (S_SLOT, S_FH))
    pro.i("s_mov_b32 s%d, 8" % S_CNT)
    pro.drain("s_waitcnt lgkmcnt(0)")
    pro.i("s_barrier")
    for (txt, tag) in x_reads_p2(0): pro.lds(txt, tag)
    for t in range(8):
        for (txt, tag) in w_reads_p2(t, 0): pro.lds(txt, tag)
    carry0 = w_reads_p2(8, 0)
    seqs = [pro]
    c = carry0
    for t in range(18):
        keyp = 'P2F' if t == 0 else ('P2T' if t == 17 else ('P2L', t & 1))
        sq, c = p2_stage(t, keyp, c)
        if t < 17: assert [x[0] for x in c] == [x[0] for x in carry0]
        seqs.append(sq)
    assert not c
    res = resolve(seqs)
    emit(pro, res)
    emit(seqs[1], res)
    lab("L_p2_loop")
    emit(seqs[2], res)
    emit(seqs[3], res)
    e("s_sub_u32 s%d, s%d, 1" % (S_CNT, S_CNT))
    e("s_cmp_lg_u32 s%d, 0" % S_CNT)
    e("s_cbranch_scc1 L_p2_loop")
    emit(seqs[18], res)
    NBAR['c'] += 1 + 17 + 1

    e("s_mul_i32 s52, s%d, %d" % (S_WAVE, PQ))
    e("v_add_u32 v1, s52, v%d" % V_L16)
    e("s_xor_b32 s53, s%d, 1" % S_WAVE)
    e("s_mul_i32 s53, s53, %d" % PQ)
    e("v_add_u32 v2, s53, v%d" % V_L16)
    e("v_add_u32 v3, %d, v%d" % (R3_O, V_L16))
    e("s_nop 7")
    for t in range(9):
        for m in range(2):
            e("ds_write_b128 v1, %s offset:%d" % (vr(acc(t, 2 + m), 4), R3_X + (t * 2 + m) * 1024))
    e("s_waitcnt lgkmcnt(0)")
    e("s_barrier")
    for t in range(9):
        for m in range(2):
            e("ds_read_b128 %s, v2 offset:%d" % (vr(acc(t, 2 + m), 4), R3_X + (t * 2 + m) * 1024))
    for t in range(9):
        for m in range(2):
            f = t * 2 + m
            e("s_waitcnt lgkmcnt(%d)" % min(15, 17 - f))
            for k in range(2):
                e("v_pk_add_f32 %s, %s, %s" % (vr(acc(t, m) + 2 * k, 2), vr(acc(t, m) + 2 * k, 2), vr(acc(t, 2 + m) + 2 * k, 2)))
    e("s_cmp_eq_u32 s%d, s%d" % (S_WAVE, S_KQ))
    e("s_cbranch_scc1 L_p3_own")
    e("s_lshl_b32 s52, s%d, 2" % S_MT)
    e("s_add_u32 s52, s52, s%d" % S_NQ)
    e("s_lshl_b32 s52, s52, 2")
    e("s_add_u32 s52, s52, s%d" % S_WAVE)
    e("s_lshl_b32 s52, s52, 2")
    e("s_add_u32 s52, s52, s%d" % S_KQ)
    e("s_mul_i32 s52, s52, %d" % PQ)
    e("s_add_u32 s52, s52, %d" % PART)
    for t in range(9):
        for m in range(2):
            f = t * 2 + m
            if f % 4 == 0 and f: e("s_add_u32 s52, s52, 4096")
            e("buffer_store_dwordx4 %s, v%d, %s, s52 offen offset:%d sc1" % (vr(acc(t, m), 4), V_L16, sWS, (f % 4) * 1024))
    e("s_branch L_p3_done")
    lab("L_p3_own")
    for t in range(9):
        for m in range(2):
            e("ds_write_b128 v3, %s offset:%d" % (vr(acc(t, m), 4), (t * 2 + m) * 1024))
    lab("L_p3_done")
    e("s_waitcnt vmcnt(0) lgkmcnt(0)")
    e("s_barrier")
    e("s_barrier")
    NBAR['c'] += 3
    e("s_branch L_tail")

lab("L_loader")
S_LW = 50
VXE, VXO, VW1, VW2 = 2, 3, 32, 41
e("s_sub_u32 s%d, s%d, 4" % (S_LW, S_WAVE))
e("v_lshrrev_b32 v23, 3, v0")
e("v_and_b32 v24, 7, v0")
e("v_lshrrev_b32 v25, 4, v0")
e("v_xor_b32 v26, v24, v25")
e("v_xor_b32 v27, 4, v26")
e("v_mul_u32_u24 v23, 1152, v23")
e("v_lshl_add_u32 v%d, v26, 4, v23" % VXE)
e("v_lshl_add_u32 v%d, v27, 4, v23" % VXO)
e("s_mov_b32 s52, 0x71c71c8")
e("s_mov_b32 s53, 0xe38e38f")
e("s_mov_b32 s54, 9216")
for q in range(9):
    e("v_add_u32 v23, %d, v0" % (q * 64))
    e("v_mul_hi_u32 v24, v23, s52")
    e("v_mul_u32_u24 v25, 36, v24")
    e("v_sub_u32 v25, v23, v25")
    e("v_lshrrev_b32 v26, 2, v24")
    e("v_and_b32 v26, 2, v26")
    e("v_xor_b32 v25, v25, v26")
    e("v_mul_lo_u32 v24, v24, s54")
    e("v_lshl_add_u32 v%d, v25, 4, v24" % (VW1 + q))
S_XB, S_WB_, S_KX, S_KW, S_LX, S_LWW = 55, 56, 57, 58, 59, 60
e("s_mul_i32 s%d, s%d, 147456" % (S_XB, S_MT))
e("s_mul_i32 s52, s%d, %d" % (S_LW, 32 * 1152))
e("s_add_u32 s%d, s%d, s52" % (S_XB, S_XB))
e("s_mul_i32 s%d, s%d, 576" % (S_WB_, S_FS))
e("s_mul_i32 s52, s%d, %d" % (S_LW, 16 * 9216))
e("s_add_u32 s%d, s%d, s52" % (S_WB_, S_WB_))
e("s_lshl_b32 s%d, s%d, 7" % (S_KX, S_ROT1))
e("s_mul_i32 s%d, s%d, %d" % (S_KW, S_ROT1, 64 * 9216))
e("s_lshl_b32 s%d, s%d, 12" % (S_LX, S_LW))
e("s_mul_i32 s%d, s%d, 9216" % (S_LWW, S_LW))

class VM:
    def __init__(self): self.ops = []
    def issue(self, need): self.ops.append(need)
    def before_barrier(self, b):
        last = -1
        for i, n in enumerate(self.ops):
            if n <= b: last = i
        if last >= 0:
            n = len(self.ops) - 1 - last
            e("s_waitcnt vmcnt(%d)" % min(n, 63))
            self.ops = self.ops[last + 1:]
    def copy(self):
        v = VM(); v.ops = list(self.ops); return v

vm = VM()
def p1_issue(j):
    slot = (j % 3) * P1_SLOT
    e("s_add_u32 s61, s%d, s%d" % (S_XB, S_KX))
    e("s_add_u32 s62, s%d, s%d" % (S_WB_, S_KW))
    for i4 in range(4):
        e("s_add_u32 m0, s%d, %d" % (S_LX, slot + P1_X + i4 * 1024))
        e("s_add_u32 s63, s61, %d" % (i4 * 9216))
        e("buffer_load_dwordx4 v%d, %s, s63 offen lds" % (VXE if i4 % 2 == 0 else VXO, sX))
        vm.issue(j)
    for q in range(9):
        e("s_add_u32 m0, s%d, %d" % (S_LWW, slot + P1_W + q * 1024))
        e("s_nop 0")
        e("buffer_load_dwordx4 v%d, %s, s62 offen lds" % (VW1 + q, sW1))
        vm.issue(j)
    e("s_add_u32 s%d, s%d, 128" % (S_KX, S_KX))
    e("s_add_u32 s%d, s%d, %d" % (S_KW, S_KW, 64 * 9216))
    e("s_cmp_eq_u32 s%d, 1152" % S_KX)
    e("s_cselect_b32 s%d, 0, s%d" % (S_KX, S_KX))
    e("s_cselect_b32 s%d, 0, s%d" % (S_KW, S_KW))

NBAR['l'] = 0
def lbar(b, v):
    v.before_barrier(b)
    e("s_barrier")

for j in range(3): p1_issue(j)
for q in range(9):
    e("v_add_u32 v23, %d, v0" % (q * 64))
    e("v_mul_hi_u32 v24, v23, s53")
    e("v_mul_u32_u24 v25, 18, v24")
    e("v_sub_u32 v25, v23, v25")
    e("v_mul_u32_u24 v24, 1152, v24")
    e("v_lshl_add_u32 v%d, v25, 4, v24" % (VW2 + q))
S_SIS = 70
S_SLB = 80
S_HB = 84
for o in range(9):
    e("s_add_u32 s52, s%d, %d" % (S_ROT2, o))
    e("s_cmp_ge_u32 s52, 9")
    e("s_cselect_b32 s53, 9, 0")
    e("s_sub_u32 s52, s52, s53")
    e("s_mul_i32 s%d, s52, %d" % (S_SIS + o, 32 * 1152))
for si in range(4):
    e("s_add_u32 s52, s%d, %d" % (S_NQ, si))
    e("s_and_b32 s52, s52, 3")
    e("s_lshl_b32 s53, s%d, 2" % S_KQ)
    e("s_add_u32 s52, s52, s53")
    e("s_mul_i32 s53, s52, %d" % (288 * 1152))
    e("s_mul_i32 s54, s%d, 288" % S_NQ)
    e("s_add_u32 s%d, s53, s54" % (S_SLB + si))
    if si:
        e("s_lshl_b32 s53, s%d, 4" % S_MT)
        e("s_add_u32 s53, s53, s52")
        e("s_mul_i32 s%d, s53, %d" % (S_HB + si - 1, HBLK))
lbar(0, vm)
for j in range(1, 7):
    lbar(j, vm)
    p1_issue(j + 2)
lbar(7, vm)
for lw in range(1, 4):
    e("s_cmp_eq_u32 s%d, %d" % (S_LW, lw))
    e("s_cbranch_scc1 L_ld%d" % lw)

def need_of_step(s): return 10 + s // 2

def issue_B(s, v):
    si, o = s // 9, s % 9
    e("s_add_u32 s61, s%d, s%d" % (S_SLB + si, S_SIS + o))
    for q in range(9):
        e("s_mov_b32 m0, %d" % (P2_B + o * P2_BS + q * 1024))
        e("s_nop 0")
        e("buffer_load_dwordx4 v%d, %s, s61 offen lds" % (VW2 + q, sW2))
        v.issue(need_of_step(s))
def issue_A(s, v):
    si, o = s // 9, s % 9
    for half in range(2):
        e("s_mov_b32 m0, %d" % (P2_A + o * P2_AS + half * 4096))
        e("s_add_u32 s61, s%d, %d" % (S_HB + si - 1, o * P2_AS + half * 4096))
        for q in range(4):
            e("buffer_load_dwordx4 v%d, %s, s61 offen offset:%d sc1 lds" % (V_L16, sWS, q * 1024))
            v.issue(need_of_step(s))

def poll(tag, soff_expr_regs, shift):
    e("s_mov_b32 s63, %d" % SPIN_MAX)
    e("v_mov_b32 v23, 0")
    lab("L_poll_%s" % tag)
    e("buffer_load_dword v24, v23, %s, s62 offen sc1" % sDBG)
    e("s_waitcnt vmcnt(0)")
    e("v_readfirstlane_b32 s64, v24")
    e("s_sub_u32 s63, s63, 1")
    e("s_cmp_eq_u32 s63, 0")
    e("s_cbranch_scc1 L_polld_%s" % tag)
    if shift: e("s_lshr_b32 s64, s64, %d" % shift)
    else: e("s_and_b32 s64, s64, 0xffff")
    e("s_cmp_ge_u32 s64, 4")
    e("s_cbranch_scc1 L_polld_%s" % tag)
    e("s_sleep 1")
    e("s_branch L_poll_%s" % tag)
    lab("L_polld_%s" % tag)

def signal(val, v):
    e("v_mov_b32 v23, 0")
    e("v_mov_b32 v24, %d" % val)
    e("s_mov_b64 s[66:67], exec")
    e("s_mov_b64 exec, 1")
    e("buffer_atomic_add v24, v23, %s, s62 offen sc1" % sDBG)
    e("s_mov_b64 exec, s[66:67]")
    v.issue(1000)

for lw in range(4):
    if lw: lab("L_ld%d" % lw)
    v = vm.copy()
    nb = 8
    for s in range(0, 5):
        if s % 4 == lw: issue_B(s, v)
    lbar(8, v); nb += 1
    for s in range(5, 9):
        if s % 4 == lw: issue_B(s, v)
    lbar(9, v); nb += 1
    if MODE == 'p1':
        e("s_waitcnt vmcnt(0)")
        e("s_branch L_end")
        NBAR['l'] = nb
        continue
    lbar(10, v); nb += 1
    for t in range(17):
        lbar(11 + t, v); nb += 1
        if t == 0 and lw == 0:
            e("s_lshl_b32 s62, s%d, 2" % S_MT)
            e("s_add_u32 s62, s62, s%d" % S_KQ)
            e("s_lshl_b32 s62, s62, 2")
            signal(1, v)
        if t == 0 and lw in (1, 3):
            e("s_lshl_b32 s62, s%d, 2" % S_MT)
            e("s_add_u32 s62, s62, s%d" % S_KQ)
            e("s_lshl_b32 s62, s62, 2")
            poll("a%d" % lw, None, 0)
            v.ops = []
        for s in (2 * t + 9, 2 * t + 10):
            if s > 35: continue
            if lw == (0 if s % 2 == 0 else 2): issue_B(s, v)
            if lw == (1 if s % 2 == 0 else 3): issue_A(s, v)
    lbar(28, v); nb += 1
    lbar(29, v); nb += 1
    lbar(30, v); nb += 1
    if lw == 0:
        e("s_lshl_b32 s62, s%d, 2" % S_MT)
        e("s_add_u32 s62, s62, s%d" % S_NQ)
        e("s_lshl_b32 s62, s62, 2")
        signal(0x10000, v)
        poll("r", None, 16)
    e("s_barrier"); nb += 1
    NBAR['l'] = nb
    e("s_branch L_tail")

assert NBAR['c'] == NBAR['l'], NBAR

if MODE != 'p1':
    lab("L_tail")
    e("s_lshl_b32 s52, s%d, 2" % S_MT)
    e("s_add_u32 s52, s52, s%d" % S_NQ)
    e("s_lshl_b32 s52, s52, 2")
    e("s_add_u32 s52, s52, s%d" % S_KQ)
    e("s_mul_i32 s52, s52, %d" % (4 * PQ))
    e("s_add_u32 s52, s52, %d" % PART)
    e("s_lshl_b32 s53, s%d, 10" % S_WAVE)
    e("s_add_u32 s52, s52, s53")
    for k in range(3):
        e("s_add_u32 s54, s%d, %d" % (S_KQ, k + 1))
        e("s_and_b32 s54, s54, 3")
        e("s_mul_i32 s54, s54, %d" % PQ)
        e("s_add_u32 s%d, s52, s54" % (56 + k))
    e("s_add_u32 s54, s53, %d" % R3_O)
    e("v_add_u32 v1, s54, v%d" % V_L16)
    e("v_and_b32 v2, 15, v0")
    e("v_mul_u32_u24 v2, 1152, v2")
    e("v_lshrrev_b32 v3, 4, v0")
    e("v_lshl_add_u32 v2, v3, 3, v2")
    e("s_lshl_b32 s54, s%d, 2" % S_MT)
    e("s_add_u32 s54, s54, s%d" % S_KQ)
    e("s_mul_i32 s54, s54, %d" % (32 * 1152))
    e("s_mul_i32 s55, s%d, 288" % S_NQ)
    e("s_add_u32 s59, s54, s55")
    def tail_load(i):
        b = 16 + i * 16
        for k in range(3):
            e("s_add_u32 s54, s%d, %d" % (56 + k, i * 8192))
            e("buffer_load_dwordx4 %s, v%d, %s, s54 offen sc1" % (vr(b + 4 + 4 * k, 4), V_L16, sWS))
        e("ds_read_b128 %s, v1 offset:%d" % (vr(b, 4), i * 8192))
    def tail_fin(i):
        b = 16 + i * 16
        for k in range(3):
            for hh in range(2):
                e("v_pk_add_f32 %s, %s, %s" % (vr(b + 2 * hh, 2), vr(b + 2 * hh, 2), vr(b + 4 + 4 * k + 2 * hh, 2)))
        e("v_cvt_pk_bf16_f32 v%d, v%d, v%d" % (b + 4, b, b + 1))
        e("v_cvt_pk_bf16_f32 v%d, v%d, v%d" % (b + 5, b + 2, b + 3))
        e("s_add_u32 s54, s%d, %d" % (S_WAVE, 8 * i))
        e("s_lshr_b32 s55, s54, 1")
        e("s_lshl_b32 s55, s55, 5")
        e("s_and_b32 s54, s54, 1")
        e("s_mul_i32 s54, s54, %d" % (16 * 1152))
        e("s_add_u32 s54, s54, s55")
        e("s_add_u32 s54, s54, s59")
        e("buffer_store_dwordx2 %s, v2, %s, s54 offen" % (vr(b + 4, 2), sOUT))
    tail_load(0)
    tail_load(1)
    e("s_cmp_ge_u32 s%d, 2" % S_WAVE)
    e("s_cbranch_scc1 L_tail2")
    tail_load(2)
    e("s_waitcnt vmcnt(0) lgkmcnt(0)")
    tail_fin(2)
    lab("L_tail2")
    e("s_waitcnt vmcnt(0) lgkmcnt(0)")
    tail_fin(0)
    tail_fin(1)

lab("L_end")
e("s_endpgm")
out.append('.section .rodata,"a"')
out.append(".p2align 6")
out.append(".amdhsa_kernel %s" % KNAME)
out.append("  .amdhsa_next_free_vgpr 256")
out.append("  .amdhsa_next_free_sgpr 96")
out.append("  .amdhsa_accum_offset 256")
out.append("  .amdhsa_group_segment_fixed_size 0")
out.append("  .amdhsa_kernarg_size 48")
out.append("  .amdhsa_user_sgpr_count 2")
out.append("  .amdhsa_user_sgpr_kernarg_segment_ptr 1")
out.append("  .amdhsa_system_sgpr_workgroup_id_x 1")
out.append(".end_amdhsa_kernel")
print("\n".join(out))
```

```python
import sys

MODE = sys.argv[1] if len(sys.argv) > 1 else 'full'
KNAME = "standalone__dense_activation_silu__prompt_kernel"
STAMP = len(sys.argv) > 2 and sys.argv[2] == 'stamp'
STOFF = 128 * 1024 * 1024
import os
ROTM = int(os.environ.get('ROTM', '1'))
STARTM = int(os.environ.get('STARTM', '1'))
TOUCH = int(os.environ.get('TOUCH', '0'))
POLLT = int(os.environ.get('POLLT', '1'))
PF1 = int(os.environ.get('PF1', '0'))
FORCESLOW = int(os.environ.get('FORCESLOW', '0'))
HSC1 = 1
PBF16 = int(os.environ.get('PBF16', '1'))
NOHST = int(os.environ.get('NOHST', '0'))
NOA = int(os.environ.get('NOA', '0'))
PFW2 = int(os.environ.get('PFW2', '99'))
def stamp_ins(i):
    if not STAMP: return []
    r = ["s_memrealtime s[98:99]", "s_waitcnt lgkmcnt(0)", "v_writelane_b32 v111, s98, %d" % i]
    r += ["s_memtime s[98:99]", "s_waitcnt lgkmcnt(0)", "v_writelane_b32 v110, s98, %d" % i]
    return r

P1_SLOT = 53248
P1_X = 0
P1_W = 16384
P2_B = 0
P2_BS = 9216
P2_A = 82944
P2_AS = 8192
LDS_BYTES = 163840
HBLK = 73728
PART = 32 * 1024 * 1024
PQ = 18432
X_BYTES, W_BYTES, OUT_BYTES, WS_BYTES = 2359296, 5308416, 2359296, 268435456
R3_X = 0
R3_O = 82944 + 18432
SPIN_MAX = 400000
FLAGOFF = 64 * 1024 * 1024

out = []
def e(s): out.append("  " + s)
def lab(s): out.append(s + ":")

sX, sW1, sW2, sOUT, sDBG, sWS = "s[16:19]", "s[20:23]", "s[24:27]", "s[28:31]", "s[32:35]", "s[36:39]"
S_MT, S_KQ, S_NQ, S_WAVE, S_ROT1, S_ROT2, S_FS = 40, 41, 42, 43, 44, 45, 46
S_FLG = 96

V_LANE = 0
V_TRE, V_TRO, V_TR8, V_X0, V_X1 = 2, 3, 4, 5, 6
V_HLO, V_HHI, V_T2 = 7, 8, 9
V_L16 = 10
WB = 16
XB = 52
TMP = 84
ACC = 112
def acc(t, mi): return ACC + (t * 4 + mi) * 4
def wb(t): return WB + t * 4
def xb(par, mi): return XB + (par * 4 + mi) * 4
def vr(b, n): return "v[%d:%d]" % (b, b + n - 1)

out.append("; @launch grid=(256,1,1) block=(512,1,1) lds=%d" % LDS_BYTES)
out.append('.amdgcn_target "amdgcn-amd-amdhsa--gfx950"')
out.append(".text")
out.append(".globl %s" % KNAME)
out.append(".p2align 8")
out.append(".type %s,@function" % KNAME)
lab(KNAME)
e("s_cmp_ge_u32 s2, 256")
e("s_cbranch_scc1 L_end")
e("s_load_dwordx4 s[4:7], s[0:1], 0")
e("s_load_dwordx4 s[8:11], s[0:1], 16")
e("s_load_dwordx4 s[12:15], s[0:1], 32")
e("v_lshrrev_b32 v1, 6, v0")
e("v_and_b32 v0, 63, v0")
e("s_and_b32 s47, s2, 7")
e("v_readfirstlane_b32 s%d, v1" % S_WAVE)
e("s_lshr_b32 s48, s2, 3")
e("s_lshr_b32 s%d, s47, 1" % S_KQ)
e("s_and_b32 s49, s47, 1")
e("s_lshl_b32 s49, s49, 3")
e("s_and_b32 s%d, s48, 7" % S_ROT2)
e("s_add_u32 s%d, s49, s%d" % (S_MT, S_ROT2))
e("s_lshr_b32 s%d, s48, 3" % S_NQ)
e("s_lshl_b32 s%d, s%d, 2" % (S_FS, S_KQ))
e("s_add_u32 s%d, s%d, s%d" % (S_FS, S_FS, S_NQ))
if ROTM == 1:
    e("s_add_u32 s%d, s%d, s%d" % (S_ROT1, S_NQ, S_ROT2))
    e("s_mul_i32 s47, s%d, 0x5556" % S_ROT1)
    e("s_lshr_b32 s47, s47, 16")
    e("s_mul_i32 s47, s47, 3")
    e("s_sub_u32 s%d, s%d, s47" % (S_ROT1, S_ROT1))
    e("s_mul_i32 s%d, s%d, 3" % (S_ROT1, S_ROT1))
elif ROTM == 0:
    e("s_mov_b32 s%d, 0" % S_ROT1)
elif ROTM == 2:
    e("s_add_u32 s%d, s%d, s%d" % (S_ROT1, S_NQ, S_ROT2))
    e("s_and_b32 s%d, s%d, 1" % (S_ROT1, S_ROT1))
    e("s_lshl_b32 s%d, s%d, 2" % (S_ROT1, S_ROT1))
e("s_lshl_b32 s47, s%d, 2" % S_MT)
e("s_add_u32 s47, s47, s%d" % S_KQ)
e("s_lshl_b32 s47, s47, 2")
e("s_add_u32 s47, s47, s%d" % S_NQ)
e("s_lshl_b32 s47, s47, 7")
e("s_add_u32 s%d, s47, %d" % (S_FLG, FLAGOFF))
e("v_lshlrev_b32 v%d, 4, v0" % V_L16)
e("s_waitcnt lgkmcnt(0)")
for (base, p, n) in ((16, 4, X_BYTES), (20, 6, W_BYTES), (24, 8, W_BYTES), (28, 10, OUT_BYTES), (32, 12, 256), (36, 14, WS_BYTES)):
    e("s_mov_b32 s%d, s%d" % (base, p))
    e("s_and_b32 s%d, s%d, 0xffff" % (base + 1, p + 1))
    e("s_mov_b32 s%d, %d" % (base + 2, n))
    e("s_mov_b32 s%d, 0x20000" % (base + 3))
for x_ in stamp_ins(0): e(x_)
e("s_cmp_ge_u32 s%d, 4" % S_WAVE)
e("s_cbranch_scc1 L_loader")

S_MH, S_FH = 50, 51
e("s_lshr_b32 s%d, s%d, 1" % (S_MH, S_WAVE))
e("s_and_b32 s%d, s%d, 1" % (S_FH, S_WAVE))
e("v_lshrrev_b32 v11, 4, v0")
e("v_bfe_u32 v12, v0, 2, 2")
e("v_and_b32 v13, 3, v0")
e("v_and_b32 v14, 1, v11")
e("v_and_b32 v15, 15, v0")
e("v_lshl_add_u32 v16, v11, 3, v12")
e("v_mul_u32_u24 v16, 576, v16")
e("v_lshl_add_u32 v16, v13, 3, v16")
e("v_lshlrev_b32 v17, 5, v14")
e("s_mul_i32 s52, s%d, 320" % S_FH)
e("s_add_u32 s52, s52, %d" % P1_W)
e("v_add_u32 v18, s52, v16")
e("v_add_u32 v%d, v18, v17" % V_TRE)
e("v_sub_u32 v%d, v18, v17" % V_TRO)
e("s_lshl_b32 s52, s%d, 5" % S_FH)
e("s_add_u32 s52, s52, %d" % (P1_W + 256))
e("s_lshl_b32 s53, s%d, 1" % S_FH)
e("s_sub_u32 s53, 1, s53")
e("v_mul_lo_u32 v18, v17, s53")
e("v_add3_u32 v%d, v16, v18, s52" % V_TR8)
e("v_lshrrev_b32 v17, 1, v15")
e("v_xor_b32 v18, v11, v17")
e("v_xor_b32 v19, 4, v18")
e("s_lshl_b32 s52, s%d, 13" % S_MH)
e("s_add_u32 s52, s52, %d" % P1_X)
e("v_lshlrev_b32 v20, 7, v15")
e("v_add_u32 v20, s52, v20")
e("v_lshl_add_u32 v%d, v18, 4, v20" % V_X0)
e("v_lshl_add_u32 v%d, v19, 4, v20" % V_X1)
e("v_lshl_add_u32 v16, v11, 2, v12")
e("v_mul_u32_u24 v16, 288, v16")
e("v_lshl_add_u32 v16, v13, 3, v16")
e("s_mul_i32 s52, s%d, %d" % (S_FH, P2_BS))
e("s_add_u32 s52, s52, %d" % P2_B)
e("v_add_u32 v%d, s52, v16" % V_T2)
e("s_lshl_b32 s52, s%d, 12" % S_MH)
e("s_mul_i32 s53, s%d, %d" % (S_FH, P2_AS))
e("s_add_u32 s52, s52, s53")
e("s_add_u32 s52, s52, %d" % P2_A)
e("s_lshl_b32 s53, s%d, 11" % S_FH)
e("s_add_u32 s54, s52, s53")
e("v_add_u32 v%d, s54, v%d" % (V_HLO, V_L16))
e("s_sub_u32 s54, s52, s53")
e("s_add_u32 s54, s54, 2048")
e("v_add_u32 v%d, s54, v%d" % (V_HHI, V_L16))
e("s_cmp_lg_u32 s%d, 0" % S_WAVE)
e("s_cbranch_scc1 L_noinit")
e("v_lshlrev_b32 v16, 2, v0")
e("v_mov_b32 v17, 0")
e("v_mov_b32 v18, 1")
e("s_mov_b64 exec, 0xffff")
e("buffer_store_dword v17, v16, %s, s%d offen sc1" % (sWS, S_FLG))
e("s_waitcnt vmcnt(0)")
e("s_mov_b64 exec, 1")
e("s_lshl_b32 s52, s%d, 4" % S_MT)
e("buffer_atomic_add v18, v17, %s, s52 offen sc1" % sDBG)
e("s_mov_b64 exec, -1")
lab("L_noinit")
for i in range(144):
    e("v_mov_b32 v%d, 0" % (ACC + i))

if PF1:
    e("v_and_b32 v16, 31, v0")
    e("v_mul_u32_u24 v16, 1152, v16")
    e("v_lshrrev_b32 v17, 5, v0")
    e("v_lshl_add_u32 v16, v17, 7, v16")
    e("s_mul_i32 s52, s%d, 147456" % S_MT)
    e("s_mul_i32 s53, s%d, %d" % (S_NQ, 32 * 1152))
    e("s_add_u32 s52, s52, s53")
    e("s_lshl_b32 s53, s%d, 8" % S_WAVE)
    e("s_add_u32 s53, s53, 256")
    e("s_min_u32 s53, s53, 896")
    e("s_add_u32 s52, s52, s53")
    e("buffer_load_dword v100, v16, %s, s52 offen" % sX)
    e("s_mov_b32 s52, 0x2aaaaaab")
    e("v_mul_hi_u32 v16, v0, s52")
    e("v_mul_u32_u24 v17, 6, v16")
    e("v_sub_u32 v17, v0, v17")
    e("v_lshlrev_b32 v17, 7, v17")
    e("v_min_u32 v17, 572, v17")
    e("v_min_u32 v16, 7, v16")
    e("s_mov_b32 s52, 9216")
    e("v_mul_lo_u32 v16, v16, s52")
    e("v_add_u32 v16, v16, v17")
    e("s_mul_i32 s52, s%d, 576" % S_FS)
    e("s_mul_i32 s53, s%d, %d" % (S_ROT2, 8 * 9216))
    e("s_add_u32 s52, s52, s53")
    e("s_add_u32 s53, s%d, 2" % S_WAVE)
    e("s_mul_i32 s53, s53, %d" % (64 * 9216))
    e("s_add_u32 s53, s52, s53")
    e("buffer_load_dword v101, v16, %s, s53 offen" % sW1)
    e("s_add_u32 s53, s%d, 6" % S_WAVE)
    e("s_min_u32 s53, s53, 8")
    e("s_mul_i32 s53, s53, %d" % (64 * 9216))
    e("s_add_u32 s53, s52, s53")
    e("buffer_load_dword v102, v16, %s, s53 offen" % sW1)

class Seq:
    def __init__(self): self.items = []
    def i(self, t): self.items.append(('i', t))
    def lds(self, t, tag): self.items.append(('lds', t, tag))
    def wait(self, tags, key): self.items.append(('wait', tags, key))
    def drain(self, t): self.items.append(('drain', t))

def w_reads_p1(t, ks, step):
    base = V_TR8 if t == 8 else (V_TRE if t % 2 == 0 else V_TRO)
    toff = 0 if t == 8 else t * 32
    r = []
    for h in range(2):
        r.append(("ds_read_b64_tr_b16 %s, v%d offset:%d" % (vr(wb(t) + 2 * h, 2), base, ks * 18432 + h * 2304 + toff), ('W', step, t)))
    return r
def x_reads_p1(ks, step):
    base = V_X0 if ks == 0 else V_X1
    return [("ds_read_b128 %s, v%d offset:%d" % (vr(xb(step & 1, mi), 4), base, mi * 2048), ('X', step)) for mi in range(4)]
def w_reads_p2(t, step):
    return [("ds_read_b64_tr_b16 %s, v%d offset:%d" % (vr(wb(t) + 2 * h, 2), V_T2, h * 4608 + t * 32), ('W', step, t)) for h in range(2)]
def x_reads_p2(step):
    r = []
    for mi in range(4):
        base = V_HLO if mi < 2 else V_HHI
        r.append(("ds_read_b128 %s, v%d offset:%d" % (vr(xb(step & 1, mi), 4), base, (mi & 1) * 1024), ('X', step)))
    return r

BAR_T = 2

def kstep(sq, keyp, step, carry, wnext, xnext, barrier=None, czero=False):
    q = list(carry)
    held = []
    blocked = barrier is not None
    if not blocked and xnext:
        pass
    for t in range(9):
        tags = [('W', step, t)] + ([('X', step)] if t == 0 else [])
        sq.wait(tags, (keyp, t))
        for mi in range(4):
            c = "0" if czero else vr(acc(t, mi), 4)
            sq.i("v_mfma_f32_16x16x32_bf16 %s, %s, %s, %s" % (vr(acc(t, mi), 4), vr(wb(t), 4), vr(xb(step & 1, mi), 4), c))
            if q and not (t == 8 and mi == 3):
                txt, tag = q.pop(0)
                sq.lds(txt, tag)
        new = wnext(t) if wnext else []
        if blocked:
            held += new
        else:
            q += new
        if t == (3 if barrier is None else BAR_T) and xnext and barrier is None:
            q += xnext
        if barrier is not None and t == BAR_T:
            assert not q, "carry not drained before barrier"
            sq.drain("s_waitcnt lgkmcnt(0)")
            for b in barrier: sq.i(b)
            blocked = False
            q += (xnext or []) + held
            held = []
    return q

def resolve(seqs):
    issued = []
    res = {}
    for sq in seqs:
        for it in sq.items:
            if it[0] == 'lds':
                issued.append(it[2])
            elif it[0] == 'drain':
                issued = []
            elif it[0] == 'wait':
                tags = it[1]
                last = -1
                for idx, tg in enumerate(issued):
                    if tg in tags: last = idx
                n = 15 if last < 0 else min(15, len(issued) - 1 - last)
                res[it[2]] = min(res.get(it[2], 15), n)
    return res

def emit(sq, res):
    for it in sq.items:
        if it[0] in ('i', 'drain'): e(it[1])
        elif it[0] == 'lds': e(it[1])
        else: e("s_waitcnt lgkmcnt(%d)" % res[it[2]])

NBAR = {'c': 0}
def cbar(): NBAR['c'] += 1

S_SLOT, S_DELTA, S_CNT = 55, 56, 57
adv1 = ["s_barrier",
        "s_add_u32 s%d, s%d, 1" % (S_SLOT, S_SLOT),
        "s_cmp_eq_u32 s%d, 3" % S_SLOT,
        "s_cselect_b32 s%d, s71, s70" % S_DELTA,
        "s_cselect_b32 s%d, 0, s%d" % (S_SLOT, S_SLOT)] + \
       ["v_add_u32 v%d, s%d, v%d" % (r, S_DELTA, r) for r in (V_TRE, V_TRO, V_TR8, V_X0, V_X1)]

def p1_stage(j, keyp, carry, last):
    sq = Seq()
    s0, s1 = 2 * j, 2 * j + 1
    c = kstep(sq, (keyp, 0), s0, carry, lambda t: w_reads_p1(t, 1, s1), x_reads_p1(1, s1))
    if not last:
        c = kstep(sq, (keyp, 1), s1, c, lambda t: w_reads_p1(t, 0, s1 + 1), x_reads_p1(0, s1 + 1), barrier=adv1)
    else:
        c = kstep(sq, (keyp, 1), s1, c, None, None, barrier=["s_barrier"])
    return sq, c

pro = Seq()
pro.i("s_mov_b32 s%d, 0" % S_SLOT)
pro.i("s_mov_b32 s%d, 8" % S_CNT)
pro.i("s_mov_b32 s70, %d" % P1_SLOT)
pro.i("s_mov_b32 s71, %d" % ((-2 * P1_SLOT) & 0xffffffff))
pro.i("s_mov_b32 s72, %d" % (2 * P2_AS))
pro.i("s_mov_b32 s73, %d" % ((-7 * P2_AS) & 0xffffffff))
pro.i("s_mov_b32 s74, %d" % (2 * P2_BS))
pro.i("s_mov_b32 s75, %d" % ((-7 * P2_BS) & 0xffffffff))
for x_ in stamp_ins(45): pro.i(x_)
pro.i("s_barrier")
for x_ in stamp_ins(1): pro.i(x_)
for (txt, tag) in x_reads_p1(0, 0): pro.lds(txt, tag)
for t in range(8):
    for (txt, tag) in w_reads_p1(t, 0, 0): pro.lds(txt, tag)
carry0 = w_reads_p1(8, 0, 0)
seqs = [pro]
c = carry0
for j in range(8):
    sq, c = p1_stage(j, 'P1L', c, False)
    assert [x[0] for x in c] == [x[0] for x in carry0], (c, carry0)
    seqs.append(sq)
sq_last, c = p1_stage(8, 'P1T', c, True)
assert not c
seqs.append(sq_last)
res = resolve(seqs)
emit(pro, res)
lab("L_p1_loop")
emit(seqs[1], res)
e("s_sub_u32 s%d, s%d, 1" % (S_CNT, S_CNT))
e("s_cmp_lg_u32 s%d, 0" % S_CNT)
e("s_cbranch_scc1 L_p1_loop")
emit(sq_last, res)
NBAR['c'] += 1 + 8 + 1
for x_ in stamp_ins(2): e(x_)

S_SO = 60
S_GB = 65
for p in range(5):
    if p < 4:
        e("s_mul_i32 s52, s%d, 5" % S_FH)
        e("s_add_u32 s52, s52, %d" % (p + 9))
    else:
        e("s_mov_b32 s52, %d" % (4 + 9))
    e("s_sub_u32 s52, s52, s%d" % S_ROT2)
    e("s_cmp_ge_u32 s52, 9")
    e("s_cselect_b32 s53, 9, 0")
    e("s_sub_u32 s52, s52, s53")
    e("s_lshl_b32 s52, s52, 13")
    e("s_lshl_b32 s53, s%d, 12" % S_MH)
    e("s_add_u32 s%d, s52, s53" % (S_SO + p))
e("s_lshl_b32 s52, s%d, 3" % S_FH)
e("s_add_u32 s%d, s%d, s52" % (S_SO + 4, S_SO + 4))
e("s_lshl_b32 s52, s%d, 4" % S_MT)
e("s_add_u32 s52, s52, s%d" % S_FS)
e("s_mul_i32 s%d, s52, %d" % (S_GB, HBLK))
e("s_mov_b32 s66, 0xbfb8aa3b")
e("s_mov_b32 s67, 0xbfb8aa3b")
e("s_mov_b32 s68, 1.0")
e("s_mov_b32 s69, 1.0")

def silu_group(regs, T, P):
    n = len(regs)
    for k, a in enumerate(regs):
        for hh in range(2):
            e("v_pk_mul_f32 %s, %s, s[66:67]" % (vr(T + 4 * k + 2 * hh, 2), vr(a + 2 * hh, 2)))
    for k in range(4 * n):
        e("v_exp_f32 v%d, v%d" % (T + k, T + k))
    for k in range(2 * n):
        e("v_pk_add_f32 %s, %s, s[68:69]" % (vr(T + 2 * k, 2), vr(T + 2 * k, 2)))
    for k in range(4 * n):
        e("v_rcp_f32 v%d, v%d" % (T + k, T + k))
    for k, a in enumerate(regs):
        for hh in range(2):
            e("v_pk_mul_f32 %s, %s, %s" % (vr(T + 4 * k + 2 * hh, 2), vr(a + 2 * hh, 2), vr(T + 4 * k + 2 * hh, 2)))
    for k in range(2 * n):
        e("v_cvt_pk_bf16_f32 v%d, v%d, v%d" % (P + k, T + 2 * k, T + 2 * k + 1))

grp = 0
for p in range(5):
    e("s_add_u32 s53, s%d, %d" % (S_SO + p, P2_A))
    e("v_add_u32 v1, s53, v%d" % V_L16)
    e("s_add_u32 s52, s%d, s%d" % (S_GB, S_SO + p))
    for mi in range(4):
        T = 16 + (grp % 3) * 8
        P = 48 + (grp % 4) * 4
        grp += 1
        if p < 4:
            silu_group([acc(2 * p, mi), acc(2 * p + 1, mi)], T, P)
            e("ds_write_b128 v1, %s offset:%d" % (vr(P, 4), mi * 1024))
            if not NOHST: e("buffer_store_dwordx4 %s, v%d, %s, s52 offen offset:%d%s" % (vr(P, 4), V_L16, sWS, mi * 1024, " sc1" if HSC1 else ""))
        else:
            silu_group([acc(8, mi)], T, P)
            e("ds_write_b64 v1, %s offset:%d" % (vr(P, 2), mi * 1024))
            e("buffer_store_dwordx2 %s, v%d, %s, s52 offen offset:%d%s" % (vr(P, 2), V_L16, sWS, mi * 1024, " sc1" if HSC1 else ""))

if MODE == 'p1':
    e("s_waitcnt vmcnt(0) lgkmcnt(0)")
    e("s_branch L_end")
else:
    S_DA, S_DB = 58, 59
    def adv2(first):
        l = []
        if first: l.append("s_waitcnt vmcnt(0)")
        if first: l += stamp_ins(5)
        l += ["s_barrier"] + (stamp_ins(6) if first else []) + [
              "s_add_u32 s%d, s%d, 2" % (S_SLOT, S_SLOT),
              "s_cmp_ge_u32 s%d, 9" % S_SLOT,
              "s_cselect_b32 s%d, s73, s72" % S_DA,
              "s_cselect_b32 s%d, s75, s74" % S_DB,
              "s_cselect_b32 s52, 9, 0",
              "s_sub_u32 s%d, s%d, s52" % (S_SLOT, S_SLOT),
              "v_add_u32 v%d, s%d, v%d" % (V_T2, S_DB, V_T2),
              "v_add_u32 v%d, s%d, v%d" % (V_HLO, S_DA, V_HLO),
              "v_add_u32 v%d, s%d, v%d" % (V_HHI, S_DA, V_HHI)]
        return l
    def p2_stage(t, keyp, carry):
        sq = Seq()
        if t < 17:
            c = kstep(sq, keyp, t, carry, lambda tt: w_reads_p2(tt, t + 1), x_reads_p2(t + 1), barrier=adv2(t == 0), czero=(t == 0))
        else:
            step = t
            def mf(tt, mi):
                sq.i("v_mfma_f32_16x16x32_bf16 %s, %s, %s, %s" % (vr(acc(tt, mi), 4), vr(wb(tt), 4), vr(xb(step & 1, mi), 4), vr(acc(tt, mi), 4)))
            q = list(carry)
            for tt in range(9):
                sq.wait([('W', step, tt)] + ([('X', step)] if tt == 0 else []), (keyp, tt))
                for mi in (2, 3):
                    mf(tt, mi)
                    if q:
                        txt, tag = q.pop(0); sq.lds(txt, tag)
            wr = ["ds_write_b128 v1, %s offset:%d" % (vr(acc(tt, 2 + m), 4), (tt * 2 + m) * 1024) for tt in range(9) for m in range(2)]
            rd = ["ds_read_b128 %s, v2 offset:%d" % (vr(acc(tt, 2 + m), 4), (tt * 2 + m) * 1024) for tt in range(9) for m in range(2)]
            k = 0
            for tt in range(9):
                for mi in (0, 1):
                    mf(tt, mi)
                    if k < 9:
                        sq.lds(wr[2 * k], ('WR',)); sq.lds(wr[2 * k + 1], ('WR',))
                    else:
                        sq.lds(rd[2 * (k - 9)], ('RD',)); sq.lds(rd[2 * (k - 9) + 1], ('RD',))
                    k += 1
                    if k == 9:
                        sq.drain("s_waitcnt lgkmcnt(0)")
                        sq.i("s_barrier")
            c = []
        return sq, c
    pro = Seq()
    pro.i("s_mov_b32 s%d, s%d" % (S_SLOT, S_FH))
    pro.i("s_mov_b32 s%d, 8" % S_CNT)
    pro.drain("s_waitcnt lgkmcnt(0)")
    for x_ in stamp_ins(3): pro.i(x_)
    pro.i("s_barrier")
    for x_ in stamp_ins(4): pro.i(x_)
    for (txt, tag) in x_reads_p2(0): pro.lds(txt, tag)
    for t in range(8):
        for (txt, tag) in w_reads_p2(t, 0): pro.lds(txt, tag)
    carry0 = w_reads_p2(8, 0)
    seqs = [pro]
    c = carry0
    for t in range(18):
        keyp = 'P2F' if t == 0 else ('P2T' if t == 17 else ('P2L', t & 1))
        sq, c = p2_stage(t, keyp, c)
        if t < 17: assert [x[0] for x in c] == [x[0] for x in carry0]
        seqs.append(sq)
    assert not c
    res = resolve(seqs)
    emit(pro, res)
    emit(seqs[1], res)
    lab("L_p2_loop")
    emit(seqs[2], res)
    emit(seqs[3], res)
    e("s_sub_u32 s%d, s%d, 1" % (S_CNT, S_CNT))
    e("s_cmp_lg_u32 s%d, 0" % S_CNT)
    e("s_cbranch_scc1 L_p2_loop")
    e("s_mul_i32 s52, s%d, %d" % (S_WAVE, PQ))
    e("s_cmp_eq_u32 s%d, 3" % S_WAVE)
    e("s_cselect_b32 s53, %d, 0" % (P2_A - 3 * PQ))
    e("s_add_u32 s52, s52, s53")
    e("v_add_u32 v1, s52, v%d" % V_L16)
    e("s_xor_b32 s54, s%d, 1" % S_WAVE)
    e("s_mul_i32 s52, s54, %d" % PQ)
    e("s_cmp_eq_u32 s54, 3")
    e("s_cselect_b32 s53, %d, 0" % (P2_A - 3 * PQ))
    e("s_add_u32 s52, s52, s53")
    e("v_add_u32 v2, s52, v%d" % V_L16)
    e("v_add_u32 v3, %d, v%d" % (R3_O, V_L16))
    emit(seqs[18], res)
    NBAR['c'] += 1 + 17 + 1
    for x_ in stamp_ins(8): e(x_)
    for t in range(9):
        for m in range(2):
            f = t * 2 + m
            e("s_waitcnt lgkmcnt(%d)" % min(15, 17 - f))
            if t == 8 and m == 0: e("s_nop 7")
            for k in range(2):
                e("v_pk_add_f32 %s, %s, %s" % (vr(acc(t, m) + 2 * k, 2), vr(acc(t, m) + 2 * k, 2), vr(acc(t, 2 + m) + 2 * k, 2)))
    e("s_cmp_eq_u32 s%d, s%d" % (S_WAVE, S_KQ))
    e("s_cbranch_scc1 L_p3_own")
    e("s_lshl_b32 s52, s%d, 2" % S_MT)
    e("s_add_u32 s52, s52, s%d" % S_NQ)
    e("s_lshl_b32 s52, s52, 2")
    e("s_add_u32 s52, s52, s%d" % S_WAVE)
    e("s_lshl_b32 s52, s52, 2")
    e("s_add_u32 s52, s52, s%d" % S_KQ)
    e("s_mul_i32 s52, s52, %d" % PQ)
    e("s_add_u32 s52, s52, %d" % PART)
    for t in range(9):
        for m in range(2):
            f = t * 2 + m
            if not PBF16:
                if f % 4 == 0 and f: e("s_add_u32 s52, s52, 4096")
                e("buffer_store_dwordx4 %s, v%d, %s, s52 offen offset:%d sc1" % (vr(acc(t, m), 4), V_L16, sWS, (f % 4) * 1024))
            else:
                d = acc(t, 2) + 2 * m
                e("v_cvt_pk_bf16_f32 v%d, v%d, v%d" % (d, acc(t, m), acc(t, m) + 1))
                e("v_cvt_pk_bf16_f32 v%d, v%d, v%d" % (d + 1, acc(t, m) + 2, acc(t, m) + 3))
                if m == 1:
                    if t % 4 == 0 and t: e("s_add_u32 s52, s52, 4096")
                    e("buffer_store_dwordx4 %s, v%d, %s, s52 offen offset:%d sc1" % (vr(acc(t, 2), 4), V_L16, sWS, (t % 4) * 1024))
    e("s_lshl_b32 s52, s%d, 2" % S_MT)
    e("s_add_u32 s52, s52, s%d" % S_WAVE)
    e("s_lshl_b32 s52, s52, 2")
    e("s_add_u32 s52, s52, s%d" % S_NQ)
    e("s_lshl_b32 s52, s52, 7")
    e("s_lshl_b32 s53, s%d, 2" % S_KQ)
    e("s_add_u32 s52, s52, s53")
    e("s_add_u32 s52, s52, %d" % (FLAGOFF + 16))
    e("v_mov_b32 v1, 0")
    e("v_mov_b32 v2, 1")
    e("s_barrier")
    e("s_waitcnt vmcnt(0)")
    for x_ in stamp_ins(9): e(x_)
    e("s_mov_b64 exec, 1")
    e("buffer_store_dword v2, v1, %s, s52 offen sc1" % sWS)
    e("s_mov_b64 exec, -1")
    e("s_branch L_tail")
    lab("L_p3_own")
    for t in range(9):
        for m in range(2):
            e("ds_write_b128 v3, %s offset:%d" % (vr(acc(t, m), 4), (t * 2 + m) * 1024))
    e("s_waitcnt lgkmcnt(0)")
    e("s_barrier")
    NBAR['c'] += 1
    e("s_branch L_tail")

lab("L_loader")
S_LW = 50
VXE, VXO, VW1, VW2 = 2, 3, 32, 41
e("s_sub_u32 s%d, s%d, 4" % (S_LW, S_WAVE))
e("v_lshrrev_b32 v23, 3, v0")
e("v_and_b32 v24, 7, v0")
e("v_lshrrev_b32 v25, 4, v0")
e("v_xor_b32 v26, v24, v25")
e("v_xor_b32 v27, 4, v26")
e("v_mul_u32_u24 v23, 1152, v23")
e("v_lshl_add_u32 v%d, v26, 4, v23" % VXE)
e("v_lshl_add_u32 v%d, v27, 4, v23" % VXO)
e("s_mov_b32 s52, 0x71c71c8")
e("s_mov_b32 s53, 0xe38e38f")
e("s_mov_b32 s54, 9216")
for q in range(9):
    e("v_add_u32 v23, %d, v0" % (q * 64))
    e("v_mul_hi_u32 v24, v23, s52")
    e("v_mul_u32_u24 v25, 36, v24")
    e("v_sub_u32 v25, v23, v25")
    e("v_lshrrev_b32 v26, 2, v24")
    e("v_and_b32 v26, 2, v26")
    e("v_xor_b32 v25, v25, v26")
    e("v_mul_lo_u32 v24, v24, s54")
    e("v_lshl_add_u32 v%d, v25, 4, v24" % (VW1 + q))
S_XB, S_WB_, S_KX, S_KW, S_LX, S_LWW = 55, 56, 57, 58, 59, 60
e("s_mul_i32 s%d, s%d, 147456" % (S_XB, S_MT))
e("s_mul_i32 s52, s%d, %d" % (S_LW, 32 * 1152))
e("s_add_u32 s%d, s%d, s52" % (S_XB, S_XB))
e("s_mul_i32 s%d, s%d, 576" % (S_WB_, S_FS))
e("s_mul_i32 s52, s%d, %d" % (S_LW, 16 * 9216))
e("s_add_u32 s%d, s%d, s52" % (S_WB_, S_WB_))
e("s_lshl_b32 s%d, s%d, 7" % (S_KX, S_ROT1))
e("s_mul_i32 s%d, s%d, %d" % (S_KW, S_ROT1, 64 * 9216))
e("s_lshl_b32 s%d, s%d, 12" % (S_LX, S_LW))
e("s_mul_i32 s%d, s%d, 9216" % (S_LWW, S_LW))

class VM:
    def __init__(self): self.ops = []
    def issue(self, need): self.ops.append(need)
    def before_barrier(self, b):
        last = -1
        for i, n in enumerate(self.ops):
            if n <= b: last = i
        if last >= 0:
            n = len(self.ops) - 1 - last
            e("s_waitcnt vmcnt(%d)" % min(n, 63))
            self.ops = self.ops[last + 1:]
    def copy(self):
        v = VM(); v.ops = list(self.ops); return v

vm = VM()
def p1_issue(j):
    slot = (j % 3) * P1_SLOT
    e("s_add_u32 s61, s%d, s%d" % (S_XB, S_KX))
    e("s_add_u32 s62, s%d, s%d" % (S_WB_, S_KW))
    for i4 in range(4):
        e("s_add_u32 m0, s%d, %d" % (S_LX, slot + P1_X + i4 * 1024))
        e("s_add_u32 s63, s61, %d" % (i4 * 9216))
        e("buffer_load_dwordx4 v%d, %s, s63 offen lds" % (VXE if i4 % 2 == 0 else VXO, sX))
        vm.issue(j)
    for q in range(9):
        e("s_add_u32 m0, s%d, %d" % (S_LWW, slot + P1_W + q * 1024))
        e("s_nop 0")
        e("buffer_load_dwordx4 v%d, %s, s62 offen lds" % (VW1 + q, sW1))
        vm.issue(j)
    e("s_add_u32 s%d, s%d, 128" % (S_KX, S_KX))
    e("s_add_u32 s%d, s%d, %d" % (S_KW, S_KW, 64 * 9216))
    e("s_cmp_eq_u32 s%d, 1152" % S_KX)
    e("s_cselect_b32 s%d, 0, s%d" % (S_KX, S_KX))
    e("s_cselect_b32 s%d, 0, s%d" % (S_KW, S_KW))

NBAR['l'] = 0
def lbar(b, v):
    v.before_barrier(b)
    if b == 0:
        for x_ in stamp_ins(43): e(x_)
    if 11 <= b <= 22:
        for x_ in stamp_ins(b + 40): e(x_)
    e("s_barrier")
    for x_ in stamp_ins(1 + b): e(x_)

for x_ in stamp_ins(44): e(x_)
p1_issue(0)
if STARTM == 0: p1_issue(1)
for x_ in stamp_ins(42): e(x_)
for q in range(9):
    e("v_add_u32 v23, %d, v0" % (q * 64))
    e("v_mul_hi_u32 v24, v23, s53")
    e("v_mul_u32_u24 v25, 18, v24")
    e("v_sub_u32 v25, v23, v25")
    e("v_mul_u32_u24 v24, 1152, v24")
    e("v_lshl_add_u32 v%d, v25, 4, v24" % (VW2 + q))
S_SIS = 70
S_SLB = 80
S_HB = 84
for o in range(9):
    e("s_add_u32 s52, s%d, %d" % (S_ROT2, o))
    e("s_cmp_ge_u32 s52, 9")
    e("s_cselect_b32 s53, 9, 0")
    e("s_sub_u32 s52, s52, s53")
    e("s_mul_i32 s%d, s52, %d" % (S_SIS + o, 32 * 1152))
for si in range(4):
    e("s_add_u32 s52, s%d, %d" % (S_NQ, si))
    e("s_and_b32 s52, s52, 3")
    e("s_lshl_b32 s53, s%d, 2" % S_KQ)
    e("s_add_u32 s52, s52, s53")
    e("s_mul_i32 s53, s52, %d" % (288 * 1152))
    e("s_mul_i32 s54, s%d, 288" % S_NQ)
    e("s_add_u32 s%d, s53, s54" % (S_SLB + si))
    if si:
        e("s_lshl_b32 s53, s%d, 4" % S_MT)
        e("s_add_u32 s53, s53, s52")
        e("s_mul_i32 s%d, s53, %d" % (S_HB + si - 1, HBLK))
if STARTM == 1:
    e("s_waitcnt vmcnt(6)")
    p1_issue(1)
lbar(0, vm)
p1_issue(2)
for j in range(1, 7):
    lbar(j, vm)
    p1_issue(j + 2)
    if j == PFW2:
        e("s_lshl_b32 s61, s%d, 2" % S_ROT2)
        e("s_add_u32 s61, s61, s%d" % S_NQ)
        e("s_mul_i32 s61, s61, 41472")
        e("s_mul_i32 s62, s%d, 1327104" % S_KQ)
        e("s_add_u32 s61, s61, s62")
        e("s_mul_i32 s62, s%d, %d" % (S_LW, 81 * 128))
        e("s_add_u32 s61, s61, s62")
        e("v_lshlrev_b32 v28, 7, v0")
        e("v_min_u32 v29, 16, v0")
        e("v_lshlrev_b32 v29, 7, v29")
        e("buffer_load_dword v30, v28, %s, s61 offen" % sW2)
        vm.issue(1000)
        e("s_add_u32 s61, s61, 8192")
        e("buffer_load_dword v31, v29, %s, s61 offen" % sW2)
        vm.issue(1000)
lbar(7, vm)
for lw in range(1, 4):
    e("s_cmp_eq_u32 s%d, %d" % (S_LW, lw))
    e("s_cbranch_scc1 L_ld%d" % lw)

def need_of_step(s): return 10 + s // 2

def step_src(s):
    if s < 9: return 0, s
    i = s - 9
    return 1 + i % 3, i // 3
def issue_B(s, v):
    si, o = step_src(s)
    e("s_add_u32 s61, s%d, s%d" % (S_SLB + si, S_SIS + o))
    for q in range(9):
        e("s_mov_b32 m0, %d" % (P2_B + (s % 9) * P2_BS + q * 1024))
        e("s_nop 0")
        e("buffer_load_dwordx4 v%d, %s, s61 offen lds" % (VW2 + q, sW2))
        v.issue(need_of_step(s))
def issue_A(s, v):
    if NOA: return
    si, o = step_src(s)
    for half in range(2):
        e("s_mov_b32 m0, %d" % (P2_A + (s % 9) * P2_AS + half * 4096))
        e("s_add_u32 s61, s%d, %d" % (S_HB + si - 1, o * P2_AS + half * 4096))
        for q in range(4):
            e("buffer_load_dwordx4 v%d, %s, s61 offen offset:%d lds" % (V_L16, sWS, q * 1024))
            v.issue(need_of_step(s))

def poll_words(tag, srd, soff, lanes_mask_sreg_or_imm, thresh):
    e("s_mov_b32 s63, %d" % SPIN_MAX)
    lab("L_poll_%s" % tag)
    e("buffer_load_dword v24, v25, %s, %s offen sc1" % (srd, soff))
    e("s_waitcnt vmcnt(0)")
    e("v_cmp_le_u32 vcc, %d, v24" % thresh)
    e("s_sub_u32 s63, s63, 1")
    e("s_cmp_eq_u32 s63, 0")
    e("s_cbranch_scc1 L_polld_%s" % tag)
    e("s_and_b32 s64, vcc_lo, %s" % lanes_mask_sreg_or_imm)
    e("s_cmp_eq_u32 s64, %s" % lanes_mask_sreg_or_imm)
    e("s_cbranch_scc1 L_polld_%s" % tag)
    e("s_sleep 1")
    e("s_branch L_poll_%s" % tag)
    lab("L_polld_%s" % tag)

for lw in range(4):
    if lw: lab("L_ld%d" % lw)
    v = vm.copy()
    nb = 8
    for s in range(0, 5):
        if s % 4 == lw: issue_B(s, v)
    lbar(8, v); nb += 1
    for s in range(5, 9):
        if s % 4 == lw: issue_B(s, v)
    lbar(9, v); nb += 1
    if MODE == 'p1':
        e("s_waitcnt vmcnt(0)")
        e("s_branch L_end")
        NBAR['l'] = nb
        continue
    if lw == 0:
        e("v_and_b32 v25, 15, v0")
        e("v_lshlrev_b32 v25, 2, v25")
        e("s_lshl_b32 s62, s%d, 4" % S_MT)
        poll_words("init", sDBG, "s62", "1", 16)
        v.ops = []
        e("v_lshlrev_b32 v26, 7, v0")
        e("s_andn2_b32 s65, s%d, 0x180" % S_FLG)
        e("s_lshl_b32 s62, s%d, 2" % S_NQ)
        e("s_add_u32 s65, s65, s62")
        e("v_mov_b32 v27, 1")
    if lw in (1, 3):
        e("v_and_b32 v25, 15, v0")
        e("v_lshlrev_b32 v25, 2, v25")
    lbar(10, v); nb += 1
    polled = set()
    pend = []
    for t in range(17):
        lbar(11 + t, v); nb += 1
        if t == 0 and lw == 0:
            e("s_mov_b64 exec, 0xf")
            e("buffer_store_dword v27, v26, %s, s65 offen sc1" % sWS)
            e("s_mov_b64 exec, -1")
            v.issue(1000)
        for s_ in (2 * t + 9, 2 * t + 10):
            if s_ > 35: continue
            if lw == (0 if s_ % 2 == 0 else 2): issue_B(s_, v)
            if lw == (1 if s_ % 2 == 0 else 3):
                pend.append(s_)
        if lw in (1, 3) and t >= POLLT:
            if not polled:
                polled.add(1)
                e("s_lshl_b32 s61, 1, s%d" % S_NQ)
                e("s_xor_b32 s61, s61, 0xf")
                poll_words("a%d" % lw, sWS, "s%d" % S_FLG, "s61", 1)
                for x_ in stamp_ins(40): e(x_)
                v.ops = []
            for s_ in pend: issue_A(s_, v)
            pend = []
    lbar(28, v); nb += 1
    lbar(29, v); nb += 1
    NBAR['l'] = nb
    e("s_branch L_tail")

assert NBAR['c'] == NBAR['l'], NBAR

lab("L_tail")
TS = 1024 if PBF16 else 2048
e("v_and_b32 v25, 15, v0")
e("v_lshlrev_b32 v25, 2, v25")
e("s_lshl_b32 s52, s%d, 2" % S_MT)
e("s_add_u32 s52, s52, s%d" % S_NQ)
e("s_lshl_b32 s52, s52, 2")
e("s_add_u32 s52, s52, s%d" % S_KQ)
e("s_mul_i32 s52, s52, %d" % (4 * PQ))
e("s_add_u32 s52, s52, %d" % PART)
e("s_mul_i32 s53, s%d, %d" % (S_WAVE, TS))
e("s_add_u32 s52, s52, s53")
for k in range(3):
    e("s_add_u32 s54, s%d, %d" % (S_KQ, k + 1))
    e("s_and_b32 s54, s54, 3")
    e("s_mul_i32 s54, s54, %d" % PQ)
    e("s_add_u32 s%d, s52, s54" % (56 + k))
e("s_lshl_b32 s53, s%d, 11" % S_WAVE)
e("s_add_u32 s54, s53, %d" % R3_O)
e("v_add_u32 v1, s54, v%d" % V_L16)
e("v_and_b32 v2, 15, v0")
e("v_mul_u32_u24 v2, 1152, v2")
e("v_lshrrev_b32 v3, 4, v0")
e("v_lshl_add_u32 v2, v3, 3, v2")
e("s_lshl_b32 s54, s%d, 2" % S_MT)
e("s_add_u32 s54, s54, s%d" % S_KQ)
e("s_mul_i32 s54, s54, %d" % (32 * 1152))
e("s_mul_i32 s55, s%d, 288" % S_NQ)
e("s_add_u32 s59, s54, s55")
e("s_lshl_b32 s55, s%d, 5" % S_WAVE)
e("s_add_u32 s59, s59, s55")
e("s_lshl_b32 s61, 16, s%d" % S_KQ)
e("s_xor_b32 s61, s61, 0xf0")
def t_own(i):
    for m in range(2): e("ds_read_b128 %s, v1 offset:%d" % (vr(32 + i * 32 + 4 * m, 4), i * 16384 + m * 1024))
def t_load(i):
    b = 32 + i * 32 + 8
    for k in range(3):
        if i: e("s_add_u32 s%d, s%d, %d" % (56 + k, 56 + k, 8 * TS))
        if PBF16:
            e("buffer_load_dwordx4 %s, v%d, %s, s%d offen sc1" % (vr(b + 8 * k, 4), V_L16, sWS, 56 + k))
        else:
            for m in range(2):
                e("buffer_load_dwordx4 %s, v%d, %s, s%d offen offset:%d sc1" % (vr(b + 8 * k + 4 * m, 4), V_L16, sWS, 56 + k, m * 1024))
def t_fin(i):
    a = 32 + i * 32; b = a + 8
    for k in range(3):
        if PBF16:
            r = b + 8 * k
            for d in (3, 2, 1, 0):
                e("v_and_b32 v%d, 0xffff0000, v%d" % (r + 2 * d + 1, r + d))
                e("v_lshlrev_b32 v%d, 16, v%d" % (r + 2 * d, r + d))
        for hh in range(4):
            e("v_pk_add_f32 %s, %s, %s" % (vr(a + 2 * hh, 2), vr(a + 2 * hh, 2), vr(b + 8 * k + 2 * hh, 2)))
    for hh in range(4):
        e("v_cvt_pk_bf16_f32 v%d, v%d, v%d" % (b + hh, a + 2 * hh, a + 2 * hh + 1))
    if i: e("s_add_u32 s59, s59, 256")
    e("buffer_store_dwordx2 %s, v2, %s, s59 offen" % (vr(b, 2), sOUT))
    e("s_add_u32 s54, s59, %d" % (16 * 1152))
    e("buffer_store_dwordx2 %s, v2, %s, s54 offen" % (vr(b + 2, 2), sOUT))
t_own(0)
e("s_cmp_lg_u32 s%d, 0" % S_WAVE)
e("s_cbranch_scc1 L_tail_a")
t_own(1)
lab("L_tail_a")
poll_words("tail", sWS, "s%d" % S_FLG, "s61", 1)
for x_ in stamp_ins(41): e(x_)
t_load(0)
e("s_cmp_lg_u32 s%d, 0" % S_WAVE)
e("s_cbranch_scc1 L_tail_b")
t_load(1)
e("s_waitcnt vmcnt(0) lgkmcnt(0)")
t_fin(0)
t_fin(1)
e("s_branch L_tail2")
lab("L_tail_b")
e("s_waitcnt vmcnt(0) lgkmcnt(0)")
t_fin(0)
lab("L_tail2")
if STAMP:
    for x_ in stamp_ins(50): e(x_)
    e("s_lshl_b32 s52, s2, 3")
    e("s_add_u32 s52, s52, s%d" % S_WAVE)
    e("s_lshl_b32 s52, s52, 9")
    e("s_add_u32 s52, s52, %d" % STOFF)
    e("v_lshlrev_b32 v1, 2, v0")
    e("buffer_store_dword v111, v1, %s, s52 offen" % sWS)
    e("buffer_store_dword v110, v1, %s, s52 offen offset:256" % sWS)
lab("L_end")
e("s_endpgm")
out.append('.section .rodata,"a"')
out.append(".p2align 6")
out.append(".amdhsa_kernel %s" % KNAME)
out.append("  .amdhsa_next_free_vgpr 256")
out.append("  .amdhsa_next_free_sgpr 100")
out.append("  .amdhsa_accum_offset 256")
out.append("  .amdhsa_group_segment_fixed_size 0")
out.append("  .amdhsa_kernarg_size 48")
out.append("  .amdhsa_user_sgpr_count 2")
out.append("  .amdhsa_user_sgpr_kernarg_segment_ptr 1")
out.append("  .amdhsa_system_sgpr_workgroup_id_x 1")
out.append(".end_amdhsa_kernel")
print("\n".join(out))
```

```python
import sys

MODE = sys.argv[1] if len(sys.argv) > 1 else 'full'
KNAME = "standalone__dense_activation_silu__prompt_kernel"
STAMP = len(sys.argv) > 2 and sys.argv[2] == 'stamp'
STOFF = 128 * 1024 * 1024
import os
ROTM = int(os.environ.get('ROTM', '1'))
STARTM = int(os.environ.get('STARTM', '1'))
TOUCH = int(os.environ.get('TOUCH', '0'))
POLLT = int(os.environ.get('POLLT', '1'))
PF1 = int(os.environ.get('PF1', '0'))
FORCESLOW = int(os.environ.get('FORCESLOW', '0'))
HSC1 = 1
PBF16 = int(os.environ.get('PBF16', '1'))
CODEPF = int(os.environ.get('CODEPF', '1'))
NOHST = int(os.environ.get('NOHST', '0'))
NOA = int(os.environ.get('NOA', '0'))
PFW2 = int(os.environ.get('PFW2', '99'))
def stamp_ins(i):
    if not STAMP: return []
    r = ["s_memrealtime s[98:99]", "s_waitcnt lgkmcnt(0)", "v_writelane_b32 v111, s98, %d" % i]
    r += ["s_memtime s[98:99]", "s_waitcnt lgkmcnt(0)", "v_writelane_b32 v110, s98, %d" % i]
    return r

P1_SLOT = 53248
P1_X = 0
P1_W = 16384
P2_B = 0
P2_BS = 9216
P2_A = 82944
P2_AS = 8192
LDS_BYTES = 163840
HBLK = 73728
PART = 32 * 1024 * 1024
PQ = 18432
X_BYTES, W_BYTES, OUT_BYTES, WS_BYTES = 2359296, 5308416, 2359296, 268435456
R3_X = 0
R3_O = 82944 + 18432
SPIN_MAX = 400000
FLAGOFF = 64 * 1024 * 1024

out = []
def e(s): out.append("  " + s)
def lab(s): out.append(s + ":")

sX, sW1, sW2, sOUT, sDBG, sWS = "s[16:19]", "s[20:23]", "s[24:27]", "s[28:31]", "s[32:35]", "s[36:39]"
S_MT, S_KQ, S_NQ, S_WAVE, S_ROT1, S_ROT2, S_FS = 40, 41, 42, 43, 44, 45, 46
S_FLG = 96

V_LANE = 0
V_TRE, V_TRO, V_TR8, V_X0, V_X1 = 2, 3, 4, 5, 6
V_HLO, V_HHI, V_T2 = 7, 8, 9
V_L16 = 10
WB = 16
XB = 52
TMP = 84
ACC = 112
def acc(t, mi): return ACC + (t * 4 + mi) * 4
def wb(t): return WB + t * 4
def xb(par, mi): return XB + (par * 4 + mi) * 4
def vr(b, n): return "v[%d:%d]" % (b, b + n - 1)

out.append("; @launch grid=(256,1,1) block=(512,1,1) lds=%d" % LDS_BYTES)
out.append('.amdgcn_target "amdgcn-amd-amdhsa--gfx950"')
out.append(".text")
out.append(".globl %s" % KNAME)
out.append(".p2align 8")
out.append(".type %s,@function" % KNAME)
lab(KNAME)
e("s_cmp_ge_u32 s2, 256")
e("s_cbranch_scc1 L_end")
e("s_load_dwordx4 s[4:7], s[0:1], 0")
e("s_load_dwordx4 s[8:11], s[0:1], 16")
e("s_load_dwordx4 s[12:15], s[0:1], 32")
e("v_lshrrev_b32 v1, 6, v0")
e("v_and_b32 v0, 63, v0")
e("s_and_b32 s47, s2, 7")
e("v_readfirstlane_b32 s%d, v1" % S_WAVE)
e("s_lshr_b32 s48, s2, 3")
e("s_lshr_b32 s%d, s47, 1" % S_KQ)
e("s_and_b32 s49, s47, 1")
e("s_lshl_b32 s49, s49, 3")
e("s_and_b32 s%d, s48, 7" % S_ROT2)
e("s_add_u32 s%d, s49, s%d" % (S_MT, S_ROT2))
e("s_lshr_b32 s%d, s48, 3" % S_NQ)
e("s_lshl_b32 s%d, s%d, 2" % (S_FS, S_KQ))
e("s_add_u32 s%d, s%d, s%d" % (S_FS, S_FS, S_NQ))
if ROTM == 1:
    e("s_add_u32 s%d, s%d, s%d" % (S_ROT1, S_NQ, S_ROT2))
    e("s_mul_i32 s47, s%d, 0x5556" % S_ROT1)
    e("s_lshr_b32 s47, s47, 16")
    e("s_mul_i32 s47, s47, 3")
    e("s_sub_u32 s%d, s%d, s47" % (S_ROT1, S_ROT1))
    e("s_mul_i32 s%d, s%d, 3" % (S_ROT1, S_ROT1))
elif ROTM == 0:
    e("s_mov_b32 s%d, 0" % S_ROT1)
elif ROTM == 2:
    e("s_add_u32 s%d, s%d, s%d" % (S_ROT1, S_NQ, S_ROT2))
    e("s_and_b32 s%d, s%d, 1" % (S_ROT1, S_ROT1))
    e("s_lshl_b32 s%d, s%d, 2" % (S_ROT1, S_ROT1))
e("s_lshl_b32 s47, s%d, 2" % S_MT)
e("s_add_u32 s47, s47, s%d" % S_KQ)
e("s_lshl_b32 s47, s47, 2")
e("s_add_u32 s47, s47, s%d" % S_NQ)
e("s_lshl_b32 s47, s47, 7")
e("s_add_u32 s%d, s47, %d" % (S_FLG, FLAGOFF))
e("v_lshlrev_b32 v%d, 4, v0" % V_L16)
e("s_waitcnt lgkmcnt(0)")
for (base, p, n) in ((16, 4, X_BYTES), (20, 6, W_BYTES), (24, 8, W_BYTES), (28, 10, OUT_BYTES), (32, 12, 256), (36, 14, WS_BYTES)):
    e("s_mov_b32 s%d, s%d" % (base, p))
    e("s_and_b32 s%d, s%d, 0xffff" % (base + 1, p + 1))
    e("s_mov_b32 s%d, %d" % (base + 2, n))
    e("s_mov_b32 s%d, 0x20000" % (base + 3))
for x_ in stamp_ins(0): e(x_)
e("s_cmp_ge_u32 s%d, 4" % S_WAVE)
e("s_cbranch_scc1 L_loader")

S_MH, S_FH = 50, 51
e("s_lshr_b32 s%d, s%d, 1" % (S_MH, S_WAVE))
e("s_and_b32 s%d, s%d, 1" % (S_FH, S_WAVE))
e("v_lshrrev_b32 v11, 4, v0")
e("v_bfe_u32 v12, v0, 2, 2")
e("v_and_b32 v13, 3, v0")
e("v_and_b32 v14, 1, v11")
e("v_and_b32 v15, 15, v0")
e("v_lshl_add_u32 v16, v11, 3, v12")
e("v_mul_u32_u24 v16, 576, v16")
e("v_lshl_add_u32 v16, v13, 3, v16")
e("v_lshlrev_b32 v17, 5, v14")
e("s_mul_i32 s52, s%d, 320" % S_FH)
e("s_add_u32 s52, s52, %d" % P1_W)
e("v_add_u32 v18, s52, v16")
e("v_add_u32 v%d, v18, v17" % V_TRE)
e("v_sub_u32 v%d, v18, v17" % V_TRO)
e("s_lshl_b32 s52, s%d, 5" % S_FH)
e("s_add_u32 s52, s52, %d" % (P1_W + 256))
e("s_lshl_b32 s53, s%d, 1" % S_FH)
e("s_sub_u32 s53, 1, s53")
e("v_mul_lo_u32 v18, v17, s53")
e("v_add3_u32 v%d, v16, v18, s52" % V_TR8)
e("v_lshrrev_b32 v17, 1, v15")
e("v_xor_b32 v18, v11, v17")
e("v_xor_b32 v19, 4, v18")
e("s_lshl_b32 s52, s%d, 13" % S_MH)
e("s_add_u32 s52, s52, %d" % P1_X)
e("v_lshlrev_b32 v20, 7, v15")
e("v_add_u32 v20, s52, v20")
e("v_lshl_add_u32 v%d, v18, 4, v20" % V_X0)
e("v_lshl_add_u32 v%d, v19, 4, v20" % V_X1)
e("v_lshl_add_u32 v16, v11, 2, v12")
e("v_mul_u32_u24 v16, 288, v16")
e("v_lshl_add_u32 v16, v13, 3, v16")
e("s_mul_i32 s52, s%d, %d" % (S_FH, P2_BS))
e("s_add_u32 s52, s52, %d" % P2_B)
e("v_add_u32 v%d, s52, v16" % V_T2)
e("s_lshl_b32 s52, s%d, 12" % S_MH)
e("s_mul_i32 s53, s%d, %d" % (S_FH, P2_AS))
e("s_add_u32 s52, s52, s53")
e("s_add_u32 s52, s52, %d" % P2_A)
e("s_lshl_b32 s53, s%d, 11" % S_FH)
e("s_add_u32 s54, s52, s53")
e("v_add_u32 v%d, s54, v%d" % (V_HLO, V_L16))
e("s_sub_u32 s54, s52, s53")
e("s_add_u32 s54, s54, 2048")
e("v_add_u32 v%d, s54, v%d" % (V_HHI, V_L16))
e("s_cmp_lg_u32 s%d, 0" % S_WAVE)
e("s_cbranch_scc1 L_noinit")
e("v_lshlrev_b32 v16, 2, v0")
e("v_mov_b32 v17, 0")
e("v_mov_b32 v18, 1")
e("s_mov_b64 exec, 0xffff")
e("buffer_store_dword v17, v16, %s, s%d offen sc1" % (sWS, S_FLG))
e("s_waitcnt vmcnt(0)")
e("s_mov_b64 exec, 1")
e("s_lshl_b32 s52, s%d, 4" % S_MT)
e("buffer_atomic_add v18, v17, %s, s52 offen sc1" % sDBG)
e("s_mov_b64 exec, -1")
lab("L_noinit")
if CODEPF:
    e("s_cmp_eq_u32 s%d, 0" % S_WAVE)
    e("s_cbranch_scc1 L_nocpf")
    e("s_getpc_b64 s[52:53]")
    lab("L_pc")
    e("s_sub_u32 s52, s52, L_pc-%s" % KNAME)
    e("s_subb_u32 s53, s53, 0")
    e("s_sub_u32 s54, s%d, 1" % S_WAVE)
    e("s_lshl_b32 s54, s54, 13")
    e("v_lshlrev_b32 v16, 7, v0")
    e("v_add_u32 v16, s54, v16")
    e("global_load_dword v100, v16, s[52:53]")
    e("v_add_u32 v16, 0x6000, v16")
    e("v_min_u32 v16, L_end-%s, v16" % KNAME)
    e("global_load_dword v101, v16, s[52:53]")
    lab("L_nocpf")
for i in range(144):
    e("v_mov_b32 v%d, 0" % (ACC + i))

if PF1:
    e("v_and_b32 v16, 31, v0")
    e("v_mul_u32_u24 v16, 1152, v16")
    e("v_lshrrev_b32 v17, 5, v0")
    e("v_lshl_add_u32 v16, v17, 7, v16")
    e("s_mul_i32 s52, s%d, 147456" % S_MT)
    e("s_mul_i32 s53, s%d, %d" % (S_NQ, 32 * 1152))
    e("s_add_u32 s52, s52, s53")
    e("s_lshl_b32 s53, s%d, 8" % S_WAVE)
    e("s_add_u32 s53, s53, 256")
    e("s_min_u32 s53, s53, 896")
    e("s_add_u32 s52, s52, s53")
    e("buffer_load_dword v100, v16, %s, s52 offen" % sX)
    e("s_mov_b32 s52, 0x2aaaaaab")
    e("v_mul_hi_u32 v16, v0, s52")
    e("v_mul_u32_u24 v17, 6, v16")
    e("v_sub_u32 v17, v0, v17")
    e("v_lshlrev_b32 v17, 7, v17")
    e("v_min_u32 v17, 572, v17")
    e("v_min_u32 v16, 7, v16")
    e("s_mov_b32 s52, 9216")
    e("v_mul_lo_u32 v16, v16, s52")
    e("v_add_u32 v16, v16, v17")
    e("s_mul_i32 s52, s%d, 576" % S_FS)
    e("s_mul_i32 s53, s%d, %d" % (S_ROT2, 8 * 9216))
    e("s_add_u32 s52, s52, s53")
    e("s_add_u32 s53, s%d, 2" % S_WAVE)
    e("s_mul_i32 s53, s53, %d" % (64 * 9216))
    e("s_add_u32 s53, s52, s53")
    e("buffer_load_dword v101, v16, %s, s53 offen" % sW1)
    e("s_add_u32 s53, s%d, 6" % S_WAVE)
    e("s_min_u32 s53, s53, 8")
    e("s_mul_i32 s53, s53, %d" % (64 * 9216))
    e("s_add_u32 s53, s52, s53")
    e("buffer_load_dword v102, v16, %s, s53 offen" % sW1)

class Seq:
    def __init__(self): self.items = []
    def i(self, t): self.items.append(('i', t))
    def lds(self, t, tag): self.items.append(('lds', t, tag))
    def wait(self, tags, key): self.items.append(('wait', tags, key))
    def drain(self, t): self.items.append(('drain', t))

def w_reads_p1(t, ks, step):
    base = V_TR8 if t == 8 else (V_TRE if t % 2 == 0 else V_TRO)
    toff = 0 if t == 8 else t * 32
    r = []
    for h in range(2):
        r.append(("ds_read_b64_tr_b16 %s, v%d offset:%d" % (vr(wb(t) + 2 * h, 2), base, ks * 18432 + h * 2304 + toff), ('W', step, t)))
    return r
def x_reads_p1(ks, step):
    base = V_X0 if ks == 0 else V_X1
    return [("ds_read_b128 %s, v%d offset:%d" % (vr(xb(step & 1, mi), 4), base, mi * 2048), ('X', step)) for mi in range(4)]
def w_reads_p2(t, step):
    return [("ds_read_b64_tr_b16 %s, v%d offset:%d" % (vr(wb(t) + 2 * h, 2), V_T2, h * 4608 + t * 32), ('W', step, t)) for h in range(2)]
def x_reads_p2(step):
    r = []
    for mi in range(4):
        base = V_HLO if mi < 2 else V_HHI
        r.append(("ds_read_b128 %s, v%d offset:%d" % (vr(xb(step & 1, mi), 4), base, (mi & 1) * 1024), ('X', step)))
    return r

BAR_T = 2

def kstep(sq, keyp, step, carry, wnext, xnext, barrier=None, czero=False):
    q = list(carry)
    held = []
    blocked = barrier is not None
    if not blocked and xnext:
        pass
    for t in range(9):
        tags = [('W', step, t)] + ([('X', step)] if t == 0 else [])
        sq.wait(tags, (keyp, t))
        for mi in range(4):
            c = "0" if czero else vr(acc(t, mi), 4)
            sq.i("v_mfma_f32_16x16x32_bf16 %s, %s, %s, %s" % (vr(acc(t, mi), 4), vr(wb(t), 4), vr(xb(step & 1, mi), 4), c))
            if q and not (t == 8 and mi == 3):
                txt, tag = q.pop(0)
                sq.lds(txt, tag)
        new = wnext(t) if wnext else []
        if blocked:
            held += new
        else:
            q += new
        if t == (3 if barrier is None else BAR_T) and xnext and barrier is None:
            q += xnext
        if barrier is not None and t == BAR_T:
            assert not q, "carry not drained before barrier"
            sq.drain("s_waitcnt lgkmcnt(0)")
            for b in barrier: sq.i(b)
            blocked = False
            q += (xnext or []) + held
            held = []
    return q

def resolve(seqs):
    issued = []
    res = {}
    for sq in seqs:
        for it in sq.items:
            if it[0] == 'lds':
                issued.append(it[2])
            elif it[0] == 'drain':
                issued = []
            elif it[0] == 'wait':
                tags = it[1]
                last = -1
                for idx, tg in enumerate(issued):
                    if tg in tags: last = idx
                n = 15 if last < 0 else min(15, len(issued) - 1 - last)
                res[it[2]] = min(res.get(it[2], 15), n)
    return res

def emit(sq, res):
    for it in sq.items:
        if it[0] in ('i', 'drain'): e(it[1])
        elif it[0] == 'lds': e(it[1])
        else: e("s_waitcnt lgkmcnt(%d)" % res[it[2]])

NBAR = {'c': 0}
def cbar(): NBAR['c'] += 1

S_SLOT, S_DELTA, S_CNT = 55, 56, 57
adv1 = ["s_barrier",
        "s_add_u32 s%d, s%d, 1" % (S_SLOT, S_SLOT),
        "s_cmp_eq_u32 s%d, 3" % S_SLOT,
        "s_cselect_b32 s%d, s71, s70" % S_DELTA,
        "s_cselect_b32 s%d, 0, s%d" % (S_SLOT, S_SLOT)] + \
       ["v_add_u32 v%d, s%d, v%d" % (r, S_DELTA, r) for r in (V_TRE, V_TRO, V_TR8, V_X0, V_X1)]

def p1_stage(j, keyp, carry, last):
    sq = Seq()
    s0, s1 = 2 * j, 2 * j + 1
    c = kstep(sq, (keyp, 0), s0, carry, lambda t: w_reads_p1(t, 1, s1), x_reads_p1(1, s1))
    if not last:
        c = kstep(sq, (keyp, 1), s1, c, lambda t: w_reads_p1(t, 0, s1 + 1), x_reads_p1(0, s1 + 1), barrier=adv1)
    else:
        c = kstep(sq, (keyp, 1), s1, c, None, None, barrier=["s_barrier"])
    return sq, c

pro = Seq()
pro.i("s_mov_b32 s%d, 0" % S_SLOT)
pro.i("s_mov_b32 s%d, 8" % S_CNT)
pro.i("s_mov_b32 s70, %d" % P1_SLOT)
pro.i("s_mov_b32 s71, %d" % ((-2 * P1_SLOT) & 0xffffffff))
pro.i("s_mov_b32 s72, %d" % (2 * P2_AS))
pro.i("s_mov_b32 s73, %d" % ((-7 * P2_AS) & 0xffffffff))
pro.i("s_mov_b32 s74, %d" % (2 * P2_BS))
pro.i("s_mov_b32 s75, %d" % ((-7 * P2_BS) & 0xffffffff))
for x_ in stamp_ins(45): pro.i(x_)
pro.i("s_barrier")
for x_ in stamp_ins(1): pro.i(x_)
for (txt, tag) in x_reads_p1(0, 0): pro.lds(txt, tag)
for t in range(8):
    for (txt, tag) in w_reads_p1(t, 0, 0): pro.lds(txt, tag)
carry0 = w_reads_p1(8, 0, 0)
seqs = [pro]
c = carry0
for j in range(8):
    sq, c = p1_stage(j, 'P1L', c, False)
    assert [x[0] for x in c] == [x[0] for x in carry0], (c, carry0)
    seqs.append(sq)
sq_last, c = p1_stage(8, 'P1T', c, True)
assert not c
seqs.append(sq_last)
res = resolve(seqs)
emit(pro, res)
lab("L_p1_loop")
emit(seqs[1], res)
e("s_sub_u32 s%d, s%d, 1" % (S_CNT, S_CNT))
e("s_cmp_lg_u32 s%d, 0" % S_CNT)
e("s_cbranch_scc1 L_p1_loop")
emit(sq_last, res)
NBAR['c'] += 1 + 8 + 1
for x_ in stamp_ins(2): e(x_)

S_SO = 60
S_GB = 65
for p in range(5):
    if p < 4:
        e("s_mul_i32 s52, s%d, 5" % S_FH)
        e("s_add_u32 s52, s52, %d" % (p + 9))
    else:
        e("s_mov_b32 s52, %d" % (4 + 9))
    e("s_sub_u32 s52, s52, s%d" % S_ROT2)
    e("s_cmp_ge_u32 s52, 9")
    e("s_cselect_b32 s53, 9, 0")
    e("s_sub_u32 s52, s52, s53")
    e("s_lshl_b32 s52, s52, 13")
    e("s_lshl_b32 s53, s%d, 12" % S_MH)
    e("s_add_u32 s%d, s52, s53" % (S_SO + p))
e("s_lshl_b32 s52, s%d, 3" % S_FH)
e("s_add_u32 s%d, s%d, s52" % (S_SO + 4, S_SO + 4))
e("s_lshl_b32 s52, s%d, 4" % S_MT)
e("s_add_u32 s52, s52, s%d" % S_FS)
e("s_mul_i32 s%d, s52, %d" % (S_GB, HBLK))
e("s_mov_b32 s66, 0xbfb8aa3b")
e("s_mov_b32 s67, 0xbfb8aa3b")
e("s_mov_b32 s68, 1.0")
e("s_mov_b32 s69, 1.0")

def silu_group(regs, T, P):
    n = len(regs)
    for k, a in enumerate(regs):
        for hh in range(2):
            e("v_pk_mul_f32 %s, %s, s[66:67]" % (vr(T + 4 * k + 2 * hh, 2), vr(a + 2 * hh, 2)))
    for k in range(4 * n):
        e("v_exp_f32 v%d, v%d" % (T + k, T + k))
    for k in range(2 * n):
        e("v_pk_add_f32 %s, %s, s[68:69]" % (vr(T + 2 * k, 2), vr(T + 2 * k, 2)))
    for k in range(4 * n):
        e("v_rcp_f32 v%d, v%d" % (T + k, T + k))
    for k, a in enumerate(regs):
        for hh in range(2):
            e("v_pk_mul_f32 %s, %s, %s" % (vr(T + 4 * k + 2 * hh, 2), vr(a + 2 * hh, 2), vr(T + 4 * k + 2 * hh, 2)))
    for k in range(2 * n):
        e("v_cvt_pk_bf16_f32 v%d, v%d, v%d" % (P + k, T + 2 * k, T + 2 * k + 1))

grp = 0
for p in range(5):
    e("s_add_u32 s53, s%d, %d" % (S_SO + p, P2_A))
    e("v_add_u32 v1, s53, v%d" % V_L16)
    e("s_add_u32 s52, s%d, s%d" % (S_GB, S_SO + p))
    for mi in range(4):
        T = 16 + (grp % 3) * 8
        P = 48 + (grp % 4) * 4
        grp += 1
        if p < 4:
            silu_group([acc(2 * p, mi), acc(2 * p + 1, mi)], T, P)
            e("ds_write_b128 v1, %s offset:%d" % (vr(P, 4), mi * 1024))
            if not NOHST: e("buffer_store_dwordx4 %s, v%d, %s, s52 offen offset:%d%s" % (vr(P, 4), V_L16, sWS, mi * 1024, " sc1" if HSC1 else ""))
        else:
            silu_group([acc(8, mi)], T, P)
            e("ds_write_b64 v1, %s offset:%d" % (vr(P, 2), mi * 1024))
            e("buffer_store_dwordx2 %s, v%d, %s, s52 offen offset:%d%s" % (vr(P, 2), V_L16, sWS, mi * 1024, " sc1" if HSC1 else ""))

if MODE == 'p1':
    e("s_waitcnt vmcnt(0) lgkmcnt(0)")
    e("s_branch L_end")
else:
    S_DA, S_DB = 58, 59
    def adv2(first):
        l = []
        if first: l.append("s_waitcnt vmcnt(0)")
        if first: l += stamp_ins(5)
        l += ["s_barrier"] + (stamp_ins(6) if first else []) + [
              "s_add_u32 s%d, s%d, 2" % (S_SLOT, S_SLOT),
              "s_cmp_ge_u32 s%d, 9" % S_SLOT,
              "s_cselect_b32 s%d, s73, s72" % S_DA,
              "s_cselect_b32 s%d, s75, s74" % S_DB,
              "s_cselect_b32 s52, 9, 0",
              "s_sub_u32 s%d, s%d, s52" % (S_SLOT, S_SLOT),
              "v_add_u32 v%d, s%d, v%d" % (V_T2, S_DB, V_T2),
              "v_add_u32 v%d, s%d, v%d" % (V_HLO, S_DA, V_HLO),
              "v_add_u32 v%d, s%d, v%d" % (V_HHI, S_DA, V_HHI)]
        return l
    def p2_stage(t, keyp, carry):
        sq = Seq()
        if t < 17:
            c = kstep(sq, keyp, t, carry, lambda tt: w_reads_p2(tt, t + 1), x_reads_p2(t + 1), barrier=adv2(t == 0), czero=(t == 0))
        else:
            step = t
            def mf(tt, mi):
                sq.i("v_mfma_f32_16x16x32_bf16 %s, %s, %s, %s" % (vr(acc(tt, mi), 4), vr(wb(tt), 4), vr(xb(step & 1, mi), 4), vr(acc(tt, mi), 4)))
            q = list(carry)
            for tt in range(9):
                sq.wait([('W', step, tt)] + ([('X', step)] if tt == 0 else []), (keyp, tt))
                for mi in (2, 3):
                    mf(tt, mi)
                    if q:
                        txt, tag = q.pop(0); sq.lds(txt, tag)
            wr = ["ds_write_b128 v1, %s offset:%d" % (vr(acc(tt, 2 + m), 4), (tt * 2 + m) * 1024) for tt in range(9) for m in range(2)]
            rd = ["ds_read_b128 %s, v2 offset:%d" % (vr(acc(tt, 2 + m), 4), (tt * 2 + m) * 1024) for tt in range(9) for m in range(2)]
            k = 0
            for tt in range(9):
                for mi in (0, 1):
                    mf(tt, mi)
                    if k < 9:
                        sq.lds(wr[2 * k], ('WR',)); sq.lds(wr[2 * k + 1], ('WR',))
                    else:
                        sq.lds(rd[2 * (k - 9)], ('RD',)); sq.lds(rd[2 * (k - 9) + 1], ('RD',))
                    k += 1
                    if k == 9:
                        sq.drain("s_waitcnt lgkmcnt(0)")
                        sq.i("s_barrier")
            c = []
        return sq, c
    pro = Seq()
    pro.i("s_mov_b32 s%d, s%d" % (S_SLOT, S_FH))
    pro.i("s_mov_b32 s%d, 8" % S_CNT)
    pro.drain("s_waitcnt lgkmcnt(0)")
    for x_ in stamp_ins(3): pro.i(x_)
    pro.i("s_barrier")
    for x_ in stamp_ins(4): pro.i(x_)
    for (txt, tag) in x_reads_p2(0): pro.lds(txt, tag)
    for t in range(8):
        for (txt, tag) in w_reads_p2(t, 0): pro.lds(txt, tag)
    carry0 = w_reads_p2(8, 0)
    seqs = [pro]
    c = carry0
    for t in range(18):
        keyp = 'P2F' if t == 0 else ('P2T' if t == 17 else ('P2L', t & 1))
        sq, c = p2_stage(t, keyp, c)
        if t < 17: assert [x[0] for x in c] == [x[0] for x in carry0]
        seqs.append(sq)
    assert not c
    res = resolve(seqs)
    emit(pro, res)
    emit(seqs[1], res)
    lab("L_p2_loop")
    emit(seqs[2], res)
    emit(seqs[3], res)
    e("s_sub_u32 s%d, s%d, 1" % (S_CNT, S_CNT))
    e("s_cmp_lg_u32 s%d, 0" % S_CNT)
    e("s_cbranch_scc1 L_p2_loop")
    e("s_mul_i32 s52, s%d, %d" % (S_WAVE, PQ))
    e("s_cmp_eq_u32 s%d, 3" % S_WAVE)
    e("s_cselect_b32 s53, %d, 0" % (P2_A - 3 * PQ))
    e("s_add_u32 s52, s52, s53")
    e("v_add_u32 v1, s52, v%d" % V_L16)
    e("s_xor_b32 s54, s%d, 1" % S_WAVE)
    e("s_mul_i32 s52, s54, %d" % PQ)
    e("s_cmp_eq_u32 s54, 3")
    e("s_cselect_b32 s53, %d, 0" % (P2_A - 3 * PQ))
    e("s_add_u32 s52, s52, s53")
    e("v_add_u32 v2, s52, v%d" % V_L16)
    e("v_add_u32 v3, %d, v%d" % (R3_O, V_L16))
    emit(seqs[18], res)
    NBAR['c'] += 1 + 17 + 1
    for x_ in stamp_ins(8): e(x_)
    for t in range(9):
        for m in range(2):
            f = t * 2 + m
            e("s_waitcnt lgkmcnt(%d)" % min(15, 17 - f))
            if t == 8 and m == 0: e("s_nop 7")
            for k in range(2):
                e("v_pk_add_f32 %s, %s, %s" % (vr(acc(t, m) + 2 * k, 2), vr(acc(t, m) + 2 * k, 2), vr(acc(t, 2 + m) + 2 * k, 2)))
    e("s_cmp_eq_u32 s%d, s%d" % (S_WAVE, S_KQ))
    e("s_cbranch_scc1 L_p3_own")
    e("s_lshl_b32 s52, s%d, 2" % S_MT)
    e("s_add_u32 s52, s52, s%d" % S_NQ)
    e("s_lshl_b32 s52, s52, 2")
    e("s_add_u32 s52, s52, s%d" % S_WAVE)
    e("s_lshl_b32 s52, s52, 2")
    e("s_add_u32 s52, s52, s%d" % S_KQ)
    e("s_mul_i32 s52, s52, %d" % PQ)
    e("s_add_u32 s52, s52, %d" % PART)
    for t in range(9):
        for m in range(2):
            f = t * 2 + m
            if not PBF16:
                if f % 4 == 0 and f: e("s_add_u32 s52, s52, 4096")
                e("buffer_store_dwordx4 %s, v%d, %s, s52 offen offset:%d sc1" % (vr(acc(t, m), 4), V_L16, sWS, (f % 4) * 1024))
            else:
                d = acc(t, 2) + 2 * m
                e("v_cvt_pk_bf16_f32 v%d, v%d, v%d" % (d, acc(t, m), acc(t, m) + 1))
                e("v_cvt_pk_bf16_f32 v%d, v%d, v%d" % (d + 1, acc(t, m) + 2, acc(t, m) + 3))
                if m == 1:
                    if t % 4 == 0 and t: e("s_add_u32 s52, s52, 4096")
                    e("buffer_store_dwordx4 %s, v%d, %s, s52 offen offset:%d sc1" % (vr(acc(t, 2), 4), V_L16, sWS, (t % 4) * 1024))
    e("s_lshl_b32 s52, s%d, 2" % S_MT)
    e("s_add_u32 s52, s52, s%d" % S_WAVE)
    e("s_lshl_b32 s52, s52, 2")
    e("s_add_u32 s52, s52, s%d" % S_NQ)
    e("s_lshl_b32 s52, s52, 7")
    e("s_lshl_b32 s53, s%d, 2" % S_KQ)
    e("s_add_u32 s52, s52, s53")
    e("s_add_u32 s52, s52, %d" % (FLAGOFF + 16))
    e("v_mov_b32 v1, 0")
    e("v_mov_b32 v2, 1")
    e("s_barrier")
    e("s_waitcnt vmcnt(0)")
    for x_ in stamp_ins(9): e(x_)
    e("s_mov_b64 exec, 1")
    e("buffer_store_dword v2, v1, %s, s52 offen sc1" % sWS)
    e("s_mov_b64 exec, -1")
    e("s_branch L_tail")
    lab("L_p3_own")
    for t in range(9):
        for m in range(2):
            e("ds_write_b128 v3, %s offset:%d" % (vr(acc(t, m), 4), (t * 2 + m) * 1024))
    e("s_waitcnt lgkmcnt(0)")
    e("s_barrier")
    NBAR['c'] += 1
    e("s_branch L_tail")

lab("L_loader")
S_LW = 50
VXE, VXO, VW1, VW2 = 2, 3, 32, 41
e("s_sub_u32 s%d, s%d, 4" % (S_LW, S_WAVE))
e("v_lshrrev_b32 v23, 3, v0")
e("v_and_b32 v24, 7, v0")
e("v_lshrrev_b32 v25, 4, v0")
e("v_xor_b32 v26, v24, v25")
e("v_xor_b32 v27, 4, v26")
e("v_mul_u32_u24 v23, 1152, v23")
e("v_lshl_add_u32 v%d, v26, 4, v23" % VXE)
e("v_lshl_add_u32 v%d, v27, 4, v23" % VXO)
e("s_mov_b32 s52, 0x71c71c8")
e("s_mov_b32 s53, 0xe38e38f")
e("s_mov_b32 s54, 9216")
for q in range(9):
    e("v_add_u32 v23, %d, v0" % (q * 64))
    e("v_mul_hi_u32 v24, v23, s52")
    e("v_mul_u32_u24 v25, 36, v24")
    e("v_sub_u32 v25, v23, v25")
    e("v_lshrrev_b32 v26, 2, v24")
    e("v_and_b32 v26, 2, v26")
    e("v_xor_b32 v25, v25, v26")
    e("v_mul_lo_u32 v24, v24, s54")
    e("v_lshl_add_u32 v%d, v25, 4, v24" % (VW1 + q))
S_XB, S_WB_, S_KX, S_KW, S_LX, S_LWW = 55, 56, 57, 58, 59, 60
e("s_mul_i32 s%d, s%d, 147456" % (S_XB, S_MT))
e("s_mul_i32 s52, s%d, %d" % (S_LW, 32 * 1152))
e("s_add_u32 s%d, s%d, s52" % (S_XB, S_XB))
e("s_mul_i32 s%d, s%d, 576" % (S_WB_, S_FS))
e("s_mul_i32 s52, s%d, %d" % (S_LW, 16 * 9216))
e("s_add_u32 s%d, s%d, s52" % (S_WB_, S_WB_))
e("s_lshl_b32 s%d, s%d, 7" % (S_KX, S_ROT1))
e("s_mul_i32 s%d, s%d, %d" % (S_KW, S_ROT1, 64 * 9216))
e("s_lshl_b32 s%d, s%d, 12" % (S_LX, S_LW))
e("s_mul_i32 s%d, s%d, 9216" % (S_LWW, S_LW))

class VM:
    def __init__(self): self.ops = []
    def issue(self, need): self.ops.append(need)
    def before_barrier(self, b):
        last = -1
        for i, n in enumerate(self.ops):
            if n <= b: last = i
        if last >= 0:
            n = len(self.ops) - 1 - last
            e("s_waitcnt vmcnt(%d)" % min(n, 63))
            self.ops = self.ops[last + 1:]
    def copy(self):
        v = VM(); v.ops = list(self.ops); return v

vm = VM()
def p1_issue(j):
    slot = (j % 3) * P1_SLOT
    e("s_add_u32 s61, s%d, s%d" % (S_XB, S_KX))
    e("s_add_u32 s62, s%d, s%d" % (S_WB_, S_KW))
    for i4 in range(4):
        e("s_add_u32 m0, s%d, %d" % (S_LX, slot + P1_X + i4 * 1024))
        e("s_add_u32 s63, s61, %d" % (i4 * 9216))
        e("buffer_load_dwordx4 v%d, %s, s63 offen lds" % (VXE if i4 % 2 == 0 else VXO, sX))
        vm.issue(j)
    for q in range(9):
        e("s_add_u32 m0, s%d, %d" % (S_LWW, slot + P1_W + q * 1024))
        e("s_nop 0")
        e("buffer_load_dwordx4 v%d, %s, s62 offen lds" % (VW1 + q, sW1))
        vm.issue(j)
    e("s_add_u32 s%d, s%d, 128" % (S_KX, S_KX))
    e("s_add_u32 s%d, s%d, %d" % (S_KW, S_KW, 64 * 9216))
    e("s_cmp_eq_u32 s%d, 1152" % S_KX)
    e("s_cselect_b32 s%d, 0, s%d" % (S_KX, S_KX))
    e("s_cselect_b32 s%d, 0, s%d" % (S_KW, S_KW))

NBAR['l'] = 0
def lbar(b, v):
    v.before_barrier(b)
    if b == 0:
        for x_ in stamp_ins(43): e(x_)
    if 11 <= b <= 22:
        for x_ in stamp_ins(b + 40): e(x_)
    e("s_barrier")
    for x_ in stamp_ins(1 + b): e(x_)

for x_ in stamp_ins(44): e(x_)
p1_issue(0)
if STARTM == 0: p1_issue(1)
for x_ in stamp_ins(42): e(x_)
for q in range(9):
    e("v_add_u32 v23, %d, v0" % (q * 64))
    e("v_mul_hi_u32 v24, v23, s53")
    e("v_mul_u32_u24 v25, 18, v24")
    e("v_sub_u32 v25, v23, v25")
    e("v_mul_u32_u24 v24, 1152, v24")
    e("v_lshl_add_u32 v%d, v25, 4, v24" % (VW2 + q))
S_SIS = 70
S_SLB = 80
S_HB = 84
for o in range(9):
    e("s_add_u32 s52, s%d, %d" % (S_ROT2, o))
    e("s_cmp_ge_u32 s52, 9")
    e("s_cselect_b32 s53, 9, 0")
    e("s_sub_u32 s52, s52, s53")
    e("s_mul_i32 s%d, s52, %d" % (S_SIS + o, 32 * 1152))
for si in range(4):
    e("s_add_u32 s52, s%d, %d" % (S_NQ, si))
    e("s_and_b32 s52, s52, 3")
    e("s_lshl_b32 s53, s%d, 2" % S_KQ)
    e("s_add_u32 s52, s52, s53")
    e("s_mul_i32 s53, s52, %d" % (288 * 1152))
    e("s_mul_i32 s54, s%d, 288" % S_NQ)
    e("s_add_u32 s%d, s53, s54" % (S_SLB + si))
    if si:
        e("s_lshl_b32 s53, s%d, 4" % S_MT)
        e("s_add_u32 s53, s53, s52")
        e("s_mul_i32 s%d, s53, %d" % (S_HB + si - 1, HBLK))
if STARTM == 1:
    e("s_waitcnt vmcnt(6)")
    p1_issue(1)
lbar(0, vm)
p1_issue(2)
for j in range(1, 7):
    lbar(j, vm)
    p1_issue(j + 2)
    if j == PFW2:
        e("s_lshl_b32 s61, s%d, 2" % S_ROT2)
        e("s_add_u32 s61, s61, s%d" % S_NQ)
        e("s_mul_i32 s61, s61, 41472")
        e("s_mul_i32 s62, s%d, 1327104" % S_KQ)
        e("s_add_u32 s61, s61, s62")
        e("s_mul_i32 s62, s%d, %d" % (S_LW, 81 * 128))
        e("s_add_u32 s61, s61, s62")
        e("v_lshlrev_b32 v28, 7, v0")
        e("v_min_u32 v29, 16, v0")
        e("v_lshlrev_b32 v29, 7, v29")
        e("buffer_load_dword v30, v28, %s, s61 offen" % sW2)
        vm.issue(1000)
        e("s_add_u32 s61, s61, 8192")
        e("buffer_load_dword v31, v29, %s, s61 offen" % sW2)
        vm.issue(1000)
lbar(7, vm)
for lw in range(1, 4):
    e("s_cmp_eq_u32 s%d, %d" % (S_LW, lw))
    e("s_cbranch_scc1 L_ld%d" % lw)

def need_of_step(s): return 10 + s // 2

def step_src(s):
    if s < 9: return 0, s
    i = s - 9
    return 1 + i % 3, i // 3
def issue_B(s, v):
    si, o = step_src(s)
    e("s_add_u32 s61, s%d, s%d" % (S_SLB + si, S_SIS + o))
    for q in range(9):
        e("s_mov_b32 m0, %d" % (P2_B + (s % 9) * P2_BS + q * 1024))
        e("s_nop 0")
        e("buffer_load_dwordx4 v%d, %s, s61 offen lds" % (VW2 + q, sW2))
        v.issue(need_of_step(s))
def issue_A(s, v):
    if NOA: return
    si, o = step_src(s)
    for half in range(2):
        e("s_mov_b32 m0, %d" % (P2_A + (s % 9) * P2_AS + half * 4096))
        e("s_add_u32 s61, s%d, %d" % (S_HB + si - 1, o * P2_AS + half * 4096))
        for q in range(4):
            e("buffer_load_dwordx4 v%d, %s, s61 offen offset:%d lds" % (V_L16, sWS, q * 1024))
            v.issue(need_of_step(s))

def poll_words(tag, srd, soff, lanes_mask_sreg_or_imm, thresh):
    e("s_mov_b32 s63, %d" % SPIN_MAX)
    lab("L_poll_%s" % tag)
    e("buffer_load_dword v24, v25, %s, %s offen sc1" % (srd, soff))
    e("s_waitcnt vmcnt(0)")
    e("v_cmp_le_u32 vcc, %d, v24" % thresh)
    e("s_sub_u32 s63, s63, 1")
    e("s_cmp_eq_u32 s63, 0")
    e("s_cbranch_scc1 L_polld_%s" % tag)
    e("s_and_b32 s64, vcc_lo, %s" % lanes_mask_sreg_or_imm)
    e("s_cmp_eq_u32 s64, %s" % lanes_mask_sreg_or_imm)
    e("s_cbranch_scc1 L_polld_%s" % tag)
    e("s_sleep 1")
    e("s_branch L_poll_%s" % tag)
    lab("L_polld_%s" % tag)

for lw in range(4):
    if lw: lab("L_ld%d" % lw)
    v = vm.copy()
    nb = 8
    for s in range(0, 5):
        if s % 4 == lw: issue_B(s, v)
    lbar(8, v); nb += 1
    for s in range(5, 9):
        if s % 4 == lw: issue_B(s, v)
    lbar(9, v); nb += 1
    if MODE == 'p1':
        e("s_waitcnt vmcnt(0)")
        e("s_branch L_end")
        NBAR['l'] = nb
        continue
    if lw == 0:
        e("v_and_b32 v25, 15, v0")
        e("v_lshlrev_b32 v25, 2, v25")
        e("s_lshl_b32 s62, s%d, 4" % S_MT)
        poll_words("init", sDBG, "s62", "1", 16)
        v.ops = []
        e("v_lshlrev_b32 v26, 7, v0")
        e("s_andn2_b32 s65, s%d, 0x180" % S_FLG)
        e("s_lshl_b32 s62, s%d, 2" % S_NQ)
        e("s_add_u32 s65, s65, s62")
        e("v_mov_b32 v27, 1")
    if lw in (1, 3):
        e("v_and_b32 v25, 15, v0")
        e("v_lshlrev_b32 v25, 2, v25")
    lbar(10, v); nb += 1
    polled = set()
    pend = []
    for t in range(17):
        lbar(11 + t, v); nb += 1
        if t == 0 and lw == 0:
            e("s_mov_b64 exec, 0xf")
            e("buffer_store_dword v27, v26, %s, s65 offen sc1" % sWS)
            e("s_mov_b64 exec, -1")
            v.issue(1000)
        for s_ in (2 * t + 9, 2 * t + 10):
            if s_ > 35: continue
            if lw == (0 if s_ % 2 == 0 else 2): issue_B(s_, v)
            if lw == (1 if s_ % 2 == 0 else 3):
                pend.append(s_)
        if lw in (1, 3) and t >= POLLT:
            if not polled:
                polled.add(1)
                e("s_lshl_b32 s61, 1, s%d" % S_NQ)
                e("s_xor_b32 s61, s61, 0xf")
                poll_words("a%d" % lw, sWS, "s%d" % S_FLG, "s61", 1)
                for x_ in stamp_ins(40): e(x_)
                v.ops = []
            for s_ in pend: issue_A(s_, v)
            pend = []
    lbar(28, v); nb += 1
    lbar(29, v); nb += 1
    NBAR['l'] = nb
    e("s_branch L_tail")

assert NBAR['c'] == NBAR['l'], NBAR

lab("L_tail")
TS = 1024 if PBF16 else 2048
e("v_and_b32 v25, 15, v0")
e("v_lshlrev_b32 v25, 2, v25")
e("s_lshl_b32 s52, s%d, 2" % S_MT)
e("s_add_u32 s52, s52, s%d" % S_NQ)
e("s_lshl_b32 s52, s52, 2")
e("s_add_u32 s52, s52, s%d" % S_KQ)
e("s_mul_i32 s52, s52, %d" % (4 * PQ))
e("s_add_u32 s52, s52, %d" % PART)
e("s_mul_i32 s53, s%d, %d" % (S_WAVE, TS))
e("s_add_u32 s52, s52, s53")
for k in range(3):
    e("s_add_u32 s54, s%d, %d" % (S_KQ, k + 1))
    e("s_and_b32 s54, s54, 3")
    e("s_mul_i32 s54, s54, %d" % PQ)
    e("s_add_u32 s%d, s52, s54" % (56 + k))
e("s_lshl_b32 s53, s%d, 11" % S_WAVE)
e("s_add_u32 s54, s53, %d" % R3_O)
e("v_add_u32 v1, s54, v%d" % V_L16)
e("v_and_b32 v2, 15, v0")
e("v_mul_u32_u24 v2, 1152, v2")
e("v_lshrrev_b32 v3, 4, v0")
e("v_lshl_add_u32 v2, v3, 3, v2")
e("s_lshl_b32 s54, s%d, 2" % S_MT)
e("s_add_u32 s54, s54, s%d" % S_KQ)
e("s_mul_i32 s54, s54, %d" % (32 * 1152))
e("s_mul_i32 s55, s%d, 288" % S_NQ)
e("s_add_u32 s59, s54, s55")
e("s_lshl_b32 s55, s%d, 5" % S_WAVE)
e("s_add_u32 s59, s59, s55")
e("s_lshl_b32 s61, 16, s%d" % S_KQ)
e("s_xor_b32 s61, s61, 0xf0")
def t_own(i):
    for m in range(2): e("ds_read_b128 %s, v1 offset:%d" % (vr(32 + i * 32 + 4 * m, 4), i * 16384 + m * 1024))
def t_load(i):
    b = 32 + i * 32 + 8
    for k in range(3):
        if i: e("s_add_u32 s%d, s%d, %d" % (56 + k, 56 + k, 8 * TS))
        if PBF16:
            e("buffer_load_dwordx4 %s, v%d, %s, s%d offen sc1" % (vr(b + 8 * k, 4), V_L16, sWS, 56 + k))
        else:
            for m in range(2):
                e("buffer_load_dwordx4 %s, v%d, %s, s%d offen offset:%d sc1" % (vr(b + 8 * k + 4 * m, 4), V_L16, sWS, 56 + k, m * 1024))
def t_fin(i):
    a = 32 + i * 32; b = a + 8
    for k in range(3):
        if PBF16:
            r = b + 8 * k
            for d in (3, 2, 1, 0):
                e("v_and_b32 v%d, 0xffff0000, v%d" % (r + 2 * d + 1, r + d))
                e("v_lshlrev_b32 v%d, 16, v%d" % (r + 2 * d, r + d))
        for hh in range(4):
            e("v_pk_add_f32 %s, %s, %s" % (vr(a + 2 * hh, 2), vr(a + 2 * hh, 2), vr(b + 8 * k + 2 * hh, 2)))
    for hh in range(4):
        e("v_cvt_pk_bf16_f32 v%d, v%d, v%d" % (b + hh, a + 2 * hh, a + 2 * hh + 1))
    if i: e("s_add_u32 s59, s59, 256")
    e("buffer_store_dwordx2 %s, v2, %s, s59 offen" % (vr(b, 2), sOUT))
    e("s_add_u32 s54, s59, %d" % (16 * 1152))
    e("buffer_store_dwordx2 %s, v2, %s, s54 offen" % (vr(b + 2, 2), sOUT))
t_own(0)
e("s_cmp_lg_u32 s%d, 0" % S_WAVE)
e("s_cbranch_scc1 L_tail_a")
t_own(1)
lab("L_tail_a")
poll_words("tail", sWS, "s%d" % S_FLG, "s61", 1)
for x_ in stamp_ins(41): e(x_)
t_load(0)
e("s_cmp_lg_u32 s%d, 0" % S_WAVE)
e("s_cbranch_scc1 L_tail_b")
t_load(1)
e("s_waitcnt vmcnt(0) lgkmcnt(0)")
t_fin(0)
t_fin(1)
e("s_branch L_tail2")
lab("L_tail_b")
e("s_waitcnt vmcnt(0) lgkmcnt(0)")
t_fin(0)
lab("L_tail2")
if STAMP:
    for x_ in stamp_ins(50): e(x_)
    e("s_lshl_b32 s52, s2, 3")
    e("s_add_u32 s52, s52, s%d" % S_WAVE)
    e("s_lshl_b32 s52, s52, 9")
    e("s_add_u32 s52, s52, %d" % STOFF)
    e("v_lshlrev_b32 v1, 2, v0")
    e("buffer_store_dword v111, v1, %s, s52 offen" % sWS)
    e("buffer_store_dword v110, v1, %s, s52 offen offset:256" % sWS)
lab("L_end")
e("s_endpgm")
out.append('.section .rodata,"a"')
out.append(".p2align 6")
out.append(".amdhsa_kernel %s" % KNAME)
out.append("  .amdhsa_next_free_vgpr 256")
out.append("  .amdhsa_next_free_sgpr 100")
out.append("  .amdhsa_accum_offset 256")
out.append("  .amdhsa_group_segment_fixed_size 0")
out.append("  .amdhsa_kernarg_size 48")
out.append("  .amdhsa_user_sgpr_count 2")
out.append("  .amdhsa_user_sgpr_kernarg_segment_ptr 1")
out.append("  .amdhsa_system_sgpr_workgroup_id_x 1")
out.append(".end_amdhsa_kernel")
print("\n".join(out))
```

```python
import sys

MODE = sys.argv[1] if len(sys.argv) > 1 else 'full'
KNAME = "standalone__dense_activation_silu__prompt_kernel"
STAMP = len(sys.argv) > 2 and sys.argv[2] == 'stamp'
STOFF = 128 * 1024 * 1024
import os
ROTM = int(os.environ.get('ROTM', '1'))
STARTM = int(os.environ.get('STARTM', '1'))
TOUCH = int(os.environ.get('TOUCH', '0'))
POLLT = int(os.environ.get('POLLT', '1'))
PF1 = int(os.environ.get('PF1', '0'))
FORCESLOW = int(os.environ.get('FORCESLOW', '0'))
HSC1 = 1
PBF16 = int(os.environ.get('PBF16', '1'))
CODEPF = int(os.environ.get('CODEPF', '1'))
NOHST = int(os.environ.get('NOHST', '0'))
NOA = int(os.environ.get('NOA', '0'))
PFW2 = int(os.environ.get('PFW2', '99'))
def stamp_ins(i):
    if not STAMP: return []
    r = ["s_memrealtime s[98:99]", "s_waitcnt lgkmcnt(0)", "v_writelane_b32 v111, s98, %d" % i]
    r += ["s_memtime s[98:99]", "s_waitcnt lgkmcnt(0)", "v_writelane_b32 v110, s98, %d" % i]
    return r

P1_SLOT = 53248
P1_X = 0
P1_W = 16384
P2_B = 0
P2_BS = 9216
P2_A = 82944
P2_AS = 8192
LDS_BYTES = 163840
HBLK = 73728
PART = 32 * 1024 * 1024
PQ = 18432
X_BYTES, W_BYTES, OUT_BYTES, WS_BYTES = 2359296, 5308416, 2359296, 268435456
R3_X = 0
R3_O = 82944 + 18432
SPIN_MAX = 400000
FLAGOFF = 64 * 1024 * 1024

out = []
def e(s): out.append("  " + s)
def lab(s): out.append(s + ":")

sX, sW1, sW2, sOUT, sDBG, sWS = "s[16:19]", "s[20:23]", "s[24:27]", "s[28:31]", "s[32:35]", "s[36:39]"
S_MT, S_KQ, S_NQ, S_WAVE, S_ROT1, S_ROT2, S_FS = 40, 41, 42, 43, 44, 45, 46
S_FLG = 96

V_LANE = 0
V_TRE, V_TRO, V_TR8, V_X0, V_X1 = 2, 3, 4, 5, 6
V_HLO, V_HHI, V_T2 = 7, 8, 9
V_L16 = 10
WB = 16
XB = 52
TMP = 84
ACC = 112
def acc(t, mi): return ACC + (t * 4 + mi) * 4
def wb(t): return WB + t * 4
def xb(par, mi): return XB + (par * 4 + mi) * 4
def vr(b, n): return "v[%d:%d]" % (b, b + n - 1)

out.append("; @launch grid=(256,1,1) block=(512,1,1) lds=%d" % LDS_BYTES)
out.append('.amdgcn_target "amdgcn-amd-amdhsa--gfx950"')
out.append(".text")
out.append(".globl %s" % KNAME)
out.append(".p2align 8")
out.append(".type %s,@function" % KNAME)
lab(KNAME)
e("s_cmp_ge_u32 s2, 256")
e("s_cbranch_scc1 L_end")
e("s_load_dwordx4 s[4:7], s[0:1], 0")
e("s_load_dwordx4 s[8:11], s[0:1], 16")
e("s_load_dwordx4 s[12:15], s[0:1], 32")
e("v_lshrrev_b32 v1, 6, v0")
e("v_and_b32 v0, 63, v0")
e("s_and_b32 s47, s2, 7")
e("v_readfirstlane_b32 s%d, v1" % S_WAVE)
if CODEPF:
    e("s_getpc_b64 s[52:53]")
    lab("L_pc")
    e("s_cmp_ge_u32 s%d, 4" % S_WAVE)
    e("s_cbranch_scc1 L_nocpf")
    e("s_sub_u32 s52, s52, L_pc-%s" % KNAME)
    e("s_subb_u32 s53, s53, 0")
    e("s_lshl_b32 s54, s%d, 13" % S_WAVE)
    e("v_lshlrev_b32 v16, 7, v0")
    e("v_add_u32 v16, s54, v16")
    e("v_min_u32 v16, L_end-%s, v16" % KNAME)
    e("global_load_dword v100, v16, s[52:53]")
    lab("L_nocpf")
e("s_lshr_b32 s48, s2, 3")
e("s_lshr_b32 s%d, s47, 1" % S_KQ)
e("s_and_b32 s49, s47, 1")
e("s_lshl_b32 s49, s49, 3")
e("s_and_b32 s%d, s48, 7" % S_ROT2)
e("s_add_u32 s%d, s49, s%d" % (S_MT, S_ROT2))
e("s_lshr_b32 s%d, s48, 3" % S_NQ)
e("s_lshl_b32 s%d, s%d, 2" % (S_FS, S_KQ))
e("s_add_u32 s%d, s%d, s%d" % (S_FS, S_FS, S_NQ))
if ROTM == 1:
    e("s_add_u32 s%d, s%d, s%d" % (S_ROT1, S_NQ, S_ROT2))
    e("s_mul_i32 s47, s%d, 0x5556" % S_ROT1)
    e("s_lshr_b32 s47, s47, 16")
    e("s_mul_i32 s47, s47, 3")
    e("s_sub_u32 s%d, s%d, s47" % (S_ROT1, S_ROT1))
    e("s_mul_i32 s%d, s%d, 3" % (S_ROT1, S_ROT1))
elif ROTM == 0:
    e("s_mov_b32 s%d, 0" % S_ROT1)
elif ROTM == 2:
    e("s_add_u32 s%d, s%d, s%d" % (S_ROT1, S_NQ, S_ROT2))
    e("s_and_b32 s%d, s%d, 1" % (S_ROT1, S_ROT1))
    e("s_lshl_b32 s%d, s%d, 2" % (S_ROT1, S_ROT1))
e("s_lshl_b32 s47, s%d, 2" % S_MT)
e("s_add_u32 s47, s47, s%d" % S_KQ)
e("s_lshl_b32 s47, s47, 2")
e("s_add_u32 s47, s47, s%d" % S_NQ)
e("s_lshl_b32 s47, s47, 7")
e("s_add_u32 s%d, s47, %d" % (S_FLG, FLAGOFF))
e("v_lshlrev_b32 v%d, 4, v0" % V_L16)
for (base, p, n) in ((16, 4, X_BYTES), (20, 6, W_BYTES), (24, 8, W_BYTES), (28, 10, OUT_BYTES), (32, 12, 256), (36, 14, WS_BYTES)):
    e("s_mov_b32 s%d, %d" % (base + 2, n))
    e("s_mov_b32 s%d, 0x20000" % (base + 3))
S_LW = 50
VXE, VXO, VW1, VW2 = 2, 3, 32, 41
e("s_sub_u32 s%d, s%d, 4" % (S_LW, S_WAVE))
e("v_lshrrev_b32 v23, 3, v0")
e("v_and_b32 v24, 7, v0")
e("v_lshrrev_b32 v25, 4, v0")
e("v_xor_b32 v26, v24, v25")
e("v_xor_b32 v27, 4, v26")
e("v_mul_u32_u24 v23, 1152, v23")
e("v_lshl_add_u32 v%d, v26, 4, v23" % VXE)
e("v_lshl_add_u32 v%d, v27, 4, v23" % VXO)
e("s_mov_b32 s52, 0x71c71c8")
e("s_mov_b32 s53, 0xe38e38f")
e("s_mov_b32 s54, 9216")
for q in range(9):
    e("v_add_u32 v23, %d, v0" % (q * 64))
    e("v_mul_hi_u32 v24, v23, s52")
    e("v_mul_u32_u24 v25, 36, v24")
    e("v_sub_u32 v25, v23, v25")
    e("v_lshrrev_b32 v26, 2, v24")
    e("v_and_b32 v26, 2, v26")
    e("v_xor_b32 v25, v25, v26")
    e("v_mul_lo_u32 v24, v24, s54")
    e("v_lshl_add_u32 v%d, v25, 4, v24" % (VW1 + q))
S_XB, S_WB_, S_KX, S_KW, S_LX, S_LWW = 55, 56, 57, 58, 59, 60
e("s_mul_i32 s%d, s%d, 147456" % (S_XB, S_MT))
e("s_mul_i32 s52, s%d, %d" % (S_LW, 32 * 1152))
e("s_add_u32 s%d, s%d, s52" % (S_XB, S_XB))
e("s_mul_i32 s%d, s%d, 576" % (S_WB_, S_FS))
e("s_mul_i32 s52, s%d, %d" % (S_LW, 16 * 9216))
e("s_add_u32 s%d, s%d, s52" % (S_WB_, S_WB_))
e("s_lshl_b32 s%d, s%d, 7" % (S_KX, S_ROT1))
e("s_mul_i32 s%d, s%d, %d" % (S_KW, S_ROT1, 64 * 9216))
e("s_lshl_b32 s%d, s%d, 12" % (S_LX, S_LW))
e("s_mul_i32 s%d, s%d, 9216" % (S_LWW, S_LW))

e("s_waitcnt lgkmcnt(0)")
for (base, p, n) in ((16, 4, X_BYTES), (20, 6, W_BYTES), (24, 8, W_BYTES), (28, 10, OUT_BYTES), (32, 12, 256), (36, 14, WS_BYTES)):
    e("s_mov_b32 s%d, s%d" % (base, p))
    e("s_and_b32 s%d, s%d, 0xffff" % (base + 1, p + 1))
for x_ in stamp_ins(0): e(x_)
e("s_cmp_ge_u32 s%d, 4" % S_WAVE)
e("s_cbranch_scc0 L_compute")
out.append("@@COMPUTE@@")
lab("L_compute")

S_MH, S_FH = 50, 51
e("s_lshr_b32 s%d, s%d, 1" % (S_MH, S_WAVE))
e("s_and_b32 s%d, s%d, 1" % (S_FH, S_WAVE))
e("v_lshrrev_b32 v11, 4, v0")
e("v_bfe_u32 v12, v0, 2, 2")
e("v_and_b32 v13, 3, v0")
e("v_and_b32 v14, 1, v11")
e("v_and_b32 v15, 15, v0")
e("v_lshl_add_u32 v16, v11, 3, v12")
e("v_mul_u32_u24 v16, 576, v16")
e("v_lshl_add_u32 v16, v13, 3, v16")
e("v_lshlrev_b32 v17, 5, v14")
e("s_mul_i32 s52, s%d, 320" % S_FH)
e("s_add_u32 s52, s52, %d" % P1_W)
e("v_add_u32 v18, s52, v16")
e("v_add_u32 v%d, v18, v17" % V_TRE)
e("v_sub_u32 v%d, v18, v17" % V_TRO)
e("s_lshl_b32 s52, s%d, 5" % S_FH)
e("s_add_u32 s52, s52, %d" % (P1_W + 256))
e("s_lshl_b32 s53, s%d, 1" % S_FH)
e("s_sub_u32 s53, 1, s53")
e("v_mul_lo_u32 v18, v17, s53")
e("v_add3_u32 v%d, v16, v18, s52" % V_TR8)
e("v_lshrrev_b32 v17, 1, v15")
e("v_xor_b32 v18, v11, v17")
e("v_xor_b32 v19, 4, v18")
e("s_lshl_b32 s52, s%d, 13" % S_MH)
e("s_add_u32 s52, s52, %d" % P1_X)
e("v_lshlrev_b32 v20, 7, v15")
e("v_add_u32 v20, s52, v20")
e("v_lshl_add_u32 v%d, v18, 4, v20" % V_X0)
e("v_lshl_add_u32 v%d, v19, 4, v20" % V_X1)
e("v_lshl_add_u32 v16, v11, 2, v12")
e("v_mul_u32_u24 v16, 288, v16")
e("v_lshl_add_u32 v16, v13, 3, v16")
e("s_mul_i32 s52, s%d, %d" % (S_FH, P2_BS))
e("s_add_u32 s52, s52, %d" % P2_B)
e("v_add_u32 v%d, s52, v16" % V_T2)
e("s_lshl_b32 s52, s%d, 12" % S_MH)
e("s_mul_i32 s53, s%d, %d" % (S_FH, P2_AS))
e("s_add_u32 s52, s52, s53")
e("s_add_u32 s52, s52, %d" % P2_A)
e("s_lshl_b32 s53, s%d, 11" % S_FH)
e("s_add_u32 s54, s52, s53")
e("v_add_u32 v%d, s54, v%d" % (V_HLO, V_L16))
e("s_sub_u32 s54, s52, s53")
e("s_add_u32 s54, s54, 2048")
e("v_add_u32 v%d, s54, v%d" % (V_HHI, V_L16))
e("s_cmp_lg_u32 s%d, 0" % S_WAVE)
e("s_cbranch_scc1 L_noinit")
e("v_lshlrev_b32 v16, 2, v0")
e("v_mov_b32 v17, 0")
e("v_mov_b32 v18, 1")
e("s_mov_b64 exec, 0xffff")
e("buffer_store_dword v17, v16, %s, s%d offen sc1" % (sWS, S_FLG))
e("s_waitcnt vmcnt(0)")
e("s_mov_b64 exec, 1")
e("s_lshl_b32 s52, s%d, 4" % S_MT)
e("buffer_atomic_add v18, v17, %s, s52 offen sc1" % sDBG)
e("s_mov_b64 exec, -1")
lab("L_noinit")
for i in range(144):
    e("v_mov_b32 v%d, 0" % (ACC + i))

if PF1:
    e("v_and_b32 v16, 31, v0")
    e("v_mul_u32_u24 v16, 1152, v16")
    e("v_lshrrev_b32 v17, 5, v0")
    e("v_lshl_add_u32 v16, v17, 7, v16")
    e("s_mul_i32 s52, s%d, 147456" % S_MT)
    e("s_mul_i32 s53, s%d, %d" % (S_NQ, 32 * 1152))
    e("s_add_u32 s52, s52, s53")
    e("s_lshl_b32 s53, s%d, 8" % S_WAVE)
    e("s_add_u32 s53, s53, 256")
    e("s_min_u32 s53, s53, 896")
    e("s_add_u32 s52, s52, s53")
    e("buffer_load_dword v100, v16, %s, s52 offen" % sX)
    e("s_mov_b32 s52, 0x2aaaaaab")
    e("v_mul_hi_u32 v16, v0, s52")
    e("v_mul_u32_u24 v17, 6, v16")
    e("v_sub_u32 v17, v0, v17")
    e("v_lshlrev_b32 v17, 7, v17")
    e("v_min_u32 v17, 572, v17")
    e("v_min_u32 v16, 7, v16")
    e("s_mov_b32 s52, 9216")
    e("v_mul_lo_u32 v16, v16, s52")
    e("v_add_u32 v16, v16, v17")
    e("s_mul_i32 s52, s%d, 576" % S_FS)
    e("s_mul_i32 s53, s%d, %d" % (S_ROT2, 8 * 9216))
    e("s_add_u32 s52, s52, s53")
    e("s_add_u32 s53, s%d, 2" % S_WAVE)
    e("s_mul_i32 s53, s53, %d" % (64 * 9216))
    e("s_add_u32 s53, s52, s53")
    e("buffer_load_dword v101, v16, %s, s53 offen" % sW1)
    e("s_add_u32 s53, s%d, 6" % S_WAVE)
    e("s_min_u32 s53, s53, 8")
    e("s_mul_i32 s53, s53, %d" % (64 * 9216))
    e("s_add_u32 s53, s52, s53")
    e("buffer_load_dword v102, v16, %s, s53 offen" % sW1)

class Seq:
    def __init__(self): self.items = []
    def i(self, t): self.items.append(('i', t))
    def lds(self, t, tag): self.items.append(('lds', t, tag))
    def wait(self, tags, key): self.items.append(('wait', tags, key))
    def drain(self, t): self.items.append(('drain', t))

def w_reads_p1(t, ks, step):
    base = V_TR8 if t == 8 else (V_TRE if t % 2 == 0 else V_TRO)
    toff = 0 if t == 8 else t * 32
    r = []
    for h in range(2):
        r.append(("ds_read_b64_tr_b16 %s, v%d offset:%d" % (vr(wb(t) + 2 * h, 2), base, ks * 18432 + h * 2304 + toff), ('W', step, t)))
    return r
def x_reads_p1(ks, step):
    base = V_X0 if ks == 0 else V_X1
    return [("ds_read_b128 %s, v%d offset:%d" % (vr(xb(step & 1, mi), 4), base, mi * 2048), ('X', step)) for mi in range(4)]
def w_reads_p2(t, step):
    return [("ds_read_b64_tr_b16 %s, v%d offset:%d" % (vr(wb(t) + 2 * h, 2), V_T2, h * 4608 + t * 32), ('W', step, t)) for h in range(2)]
def x_reads_p2(step):
    r = []
    for mi in range(4):
        base = V_HLO if mi < 2 else V_HHI
        r.append(("ds_read_b128 %s, v%d offset:%d" % (vr(xb(step & 1, mi), 4), base, (mi & 1) * 1024), ('X', step)))
    return r

BAR_T = 2

def kstep(sq, keyp, step, carry, wnext, xnext, barrier=None, czero=False):
    q = list(carry)
    held = []
    blocked = barrier is not None
    if not blocked and xnext:
        pass
    for t in range(9):
        tags = [('W', step, t)] + ([('X', step)] if t == 0 else [])
        sq.wait(tags, (keyp, t))
        for mi in range(4):
            c = "0" if czero else vr(acc(t, mi), 4)
            sq.i("v_mfma_f32_16x16x32_bf16 %s, %s, %s, %s" % (vr(acc(t, mi), 4), vr(wb(t), 4), vr(xb(step & 1, mi), 4), c))
            if q and not (t == 8 and mi == 3):
                txt, tag = q.pop(0)
                sq.lds(txt, tag)
        new = wnext(t) if wnext else []
        if blocked:
            held += new
        else:
            q += new
        if t == (3 if barrier is None else BAR_T) and xnext and barrier is None:
            q += xnext
        if barrier is not None and t == BAR_T:
            assert not q, "carry not drained before barrier"
            sq.drain("s_waitcnt lgkmcnt(0)")
            for b in barrier: sq.i(b)
            blocked = False
            q += (xnext or []) + held
            held = []
    return q

def resolve(seqs):
    issued = []
    res = {}
    for sq in seqs:
        for it in sq.items:
            if it[0] == 'lds':
                issued.append(it[2])
            elif it[0] == 'drain':
                issued = []
            elif it[0] == 'wait':
                tags = it[1]
                last = -1
                for idx, tg in enumerate(issued):
                    if tg in tags: last = idx
                n = 15 if last < 0 else min(15, len(issued) - 1 - last)
                res[it[2]] = min(res.get(it[2], 15), n)
    return res

def emit(sq, res):
    for it in sq.items:
        if it[0] in ('i', 'drain'): e(it[1])
        elif it[0] == 'lds': e(it[1])
        else: e("s_waitcnt lgkmcnt(%d)" % res[it[2]])

NBAR = {'c': 0}
def cbar(): NBAR['c'] += 1

S_SLOT, S_DELTA, S_CNT = 55, 56, 57
adv1 = ["s_barrier",
        "s_add_u32 s%d, s%d, 1" % (S_SLOT, S_SLOT),
        "s_cmp_eq_u32 s%d, 3" % S_SLOT,
        "s_cselect_b32 s%d, s71, s70" % S_DELTA,
        "s_cselect_b32 s%d, 0, s%d" % (S_SLOT, S_SLOT)] + \
       ["v_add_u32 v%d, s%d, v%d" % (r, S_DELTA, r) for r in (V_TRE, V_TRO, V_TR8, V_X0, V_X1)]

def p1_stage(j, keyp, carry, last):
    sq = Seq()
    s0, s1 = 2 * j, 2 * j + 1
    c = kstep(sq, (keyp, 0), s0, carry, lambda t: w_reads_p1(t, 1, s1), x_reads_p1(1, s1))
    if not last:
        c = kstep(sq, (keyp, 1), s1, c, lambda t: w_reads_p1(t, 0, s1 + 1), x_reads_p1(0, s1 + 1), barrier=adv1)
    else:
        c = kstep(sq, (keyp, 1), s1, c, None, None, barrier=["s_barrier"])
    return sq, c

pro = Seq()
pro.i("s_mov_b32 s%d, 0" % S_SLOT)
pro.i("s_mov_b32 s%d, 8" % S_CNT)
pro.i("s_mov_b32 s70, %d" % P1_SLOT)
pro.i("s_mov_b32 s71, %d" % ((-2 * P1_SLOT) & 0xffffffff))
pro.i("s_mov_b32 s72, %d" % (2 * P2_AS))
pro.i("s_mov_b32 s73, %d" % ((-7 * P2_AS) & 0xffffffff))
pro.i("s_mov_b32 s74, %d" % (2 * P2_BS))
pro.i("s_mov_b32 s75, %d" % ((-7 * P2_BS) & 0xffffffff))
for x_ in stamp_ins(45): pro.i(x_)
pro.i("s_barrier")
for x_ in stamp_ins(1): pro.i(x_)
for (txt, tag) in x_reads_p1(0, 0): pro.lds(txt, tag)
for t in range(8):
    for (txt, tag) in w_reads_p1(t, 0, 0): pro.lds(txt, tag)
carry0 = w_reads_p1(8, 0, 0)
seqs = [pro]
c = carry0
for j in range(8):
    sq, c = p1_stage(j, 'P1L', c, False)
    assert [x[0] for x in c] == [x[0] for x in carry0], (c, carry0)
    seqs.append(sq)
sq_last, c = p1_stage(8, 'P1T', c, True)
assert not c
seqs.append(sq_last)
res = resolve(seqs)
emit(pro, res)
lab("L_p1_loop")
emit(seqs[1], res)
e("s_sub_u32 s%d, s%d, 1" % (S_CNT, S_CNT))
e("s_cmp_lg_u32 s%d, 0" % S_CNT)
e("s_cbranch_scc1 L_p1_loop")
emit(sq_last, res)
NBAR['c'] += 1 + 8 + 1
for x_ in stamp_ins(2): e(x_)

S_SO = 60
S_GB = 65
for p in range(5):
    if p < 4:
        e("s_mul_i32 s52, s%d, 5" % S_FH)
        e("s_add_u32 s52, s52, %d" % (p + 9))
    else:
        e("s_mov_b32 s52, %d" % (4 + 9))
    e("s_sub_u32 s52, s52, s%d" % S_ROT2)
    e("s_cmp_ge_u32 s52, 9")
    e("s_cselect_b32 s53, 9, 0")
    e("s_sub_u32 s52, s52, s53")
    e("s_lshl_b32 s52, s52, 13")
    e("s_lshl_b32 s53, s%d, 12" % S_MH)
    e("s_add_u32 s%d, s52, s53" % (S_SO + p))
e("s_lshl_b32 s52, s%d, 3" % S_FH)
e("s_add_u32 s%d, s%d, s52" % (S_SO + 4, S_SO + 4))
e("s_lshl_b32 s52, s%d, 4" % S_MT)
e("s_add_u32 s52, s52, s%d" % S_FS)
e("s_mul_i32 s%d, s52, %d" % (S_GB, HBLK))
e("s_mov_b32 s66, 0xbfb8aa3b")
e("s_mov_b32 s67, 0xbfb8aa3b")
e("s_mov_b32 s68, 1.0")
e("s_mov_b32 s69, 1.0")

def silu_group(regs, T, P):
    n = len(regs)
    for k, a in enumerate(regs):
        for hh in range(2):
            e("v_pk_mul_f32 %s, %s, s[66:67]" % (vr(T + 4 * k + 2 * hh, 2), vr(a + 2 * hh, 2)))
    for k in range(4 * n):
        e("v_exp_f32 v%d, v%d" % (T + k, T + k))
    for k in range(2 * n):
        e("v_pk_add_f32 %s, %s, s[68:69]" % (vr(T + 2 * k, 2), vr(T + 2 * k, 2)))
    for k in range(4 * n):
        e("v_rcp_f32 v%d, v%d" % (T + k, T + k))
    for k, a in enumerate(regs):
        for hh in range(2):
            e("v_pk_mul_f32 %s, %s, %s" % (vr(T + 4 * k + 2 * hh, 2), vr(a + 2 * hh, 2), vr(T + 4 * k + 2 * hh, 2)))
    for k in range(2 * n):
        e("v_cvt_pk_bf16_f32 v%d, v%d, v%d" % (P + k, T + 2 * k, T + 2 * k + 1))

grp = 0
for p in range(5):
    e("s_add_u32 s53, s%d, %d" % (S_SO + p, P2_A))
    e("v_add_u32 v1, s53, v%d" % V_L16)
    e("s_add_u32 s52, s%d, s%d" % (S_GB, S_SO + p))
    for mi in range(4):
        T = 16 + (grp % 3) * 8
        P = 48 + (grp % 4) * 4
        grp += 1
        if p < 4:
            silu_group([acc(2 * p, mi), acc(2 * p + 1, mi)], T, P)
            e("ds_write_b128 v1, %s offset:%d" % (vr(P, 4), mi * 1024))
            if not NOHST: e("buffer_store_dwordx4 %s, v%d, %s, s52 offen offset:%d%s" % (vr(P, 4), V_L16, sWS, mi * 1024, " sc1" if HSC1 else ""))
        else:
            silu_group([acc(8, mi)], T, P)
            e("ds_write_b64 v1, %s offset:%d" % (vr(P, 2), mi * 1024))
            e("buffer_store_dwordx2 %s, v%d, %s, s52 offen offset:%d%s" % (vr(P, 2), V_L16, sWS, mi * 1024, " sc1" if HSC1 else ""))

if MODE == 'p1':
    e("s_waitcnt vmcnt(0) lgkmcnt(0)")
    e("s_branch L_end")
else:
    S_DA, S_DB = 58, 59
    def adv2(first):
        l = []
        if first: l.append("s_waitcnt vmcnt(0)")
        if first: l += stamp_ins(5)
        l += ["s_barrier"] + (stamp_ins(6) if first else []) + [
              "s_add_u32 s%d, s%d, 2" % (S_SLOT, S_SLOT),
              "s_cmp_ge_u32 s%d, 9" % S_SLOT,
              "s_cselect_b32 s%d, s73, s72" % S_DA,
              "s_cselect_b32 s%d, s75, s74" % S_DB,
              "s_cselect_b32 s52, 9, 0",
              "s_sub_u32 s%d, s%d, s52" % (S_SLOT, S_SLOT),
              "v_add_u32 v%d, s%d, v%d" % (V_T2, S_DB, V_T2),
              "v_add_u32 v%d, s%d, v%d" % (V_HLO, S_DA, V_HLO),
              "v_add_u32 v%d, s%d, v%d" % (V_HHI, S_DA, V_HHI)]
        return l
    def p2_stage(t, keyp, carry):
        sq = Seq()
        if t < 17:
            c = kstep(sq, keyp, t, carry, lambda tt: w_reads_p2(tt, t + 1), x_reads_p2(t + 1), barrier=adv2(t == 0), czero=(t == 0))
        else:
            step = t
            def mf(tt, mi):
                sq.i("v_mfma_f32_16x16x32_bf16 %s, %s, %s, %s" % (vr(acc(tt, mi), 4), vr(wb(tt), 4), vr(xb(step & 1, mi), 4), vr(acc(tt, mi), 4)))
            q = list(carry)
            for tt in range(9):
                sq.wait([('W', step, tt)] + ([('X', step)] if tt == 0 else []), (keyp, tt))
                for mi in (2, 3):
                    mf(tt, mi)
                    if q:
                        txt, tag = q.pop(0); sq.lds(txt, tag)
            wr = ["ds_write_b128 v1, %s offset:%d" % (vr(acc(tt, 2 + m), 4), (tt * 2 + m) * 1024) for tt in range(9) for m in range(2)]
            rd = ["ds_read_b128 %s, v2 offset:%d" % (vr(acc(tt, 2 + m), 4), (tt * 2 + m) * 1024) for tt in range(9) for m in range(2)]
            k = 0
            for tt in range(9):
                for mi in (0, 1):
                    mf(tt, mi)
                    if k < 9:
                        sq.lds(wr[2 * k], ('WR',)); sq.lds(wr[2 * k + 1], ('WR',))
                    else:
                        sq.lds(rd[2 * (k - 9)], ('RD',)); sq.lds(rd[2 * (k - 9) + 1], ('RD',))
                    k += 1
                    if k == 9:
                        sq.drain("s_waitcnt lgkmcnt(0)")
                        sq.i("s_barrier")
            c = []
        return sq, c
    pro = Seq()
    pro.i("s_mov_b32 s%d, s%d" % (S_SLOT, S_FH))
    pro.i("s_mov_b32 s%d, 8" % S_CNT)
    pro.drain("s_waitcnt lgkmcnt(0)")
    for x_ in stamp_ins(3): pro.i(x_)
    pro.i("s_barrier")
    for x_ in stamp_ins(4): pro.i(x_)
    for (txt, tag) in x_reads_p2(0): pro.lds(txt, tag)
    for t in range(8):
        for (txt, tag) in w_reads_p2(t, 0): pro.lds(txt, tag)
    carry0 = w_reads_p2(8, 0)
    seqs = [pro]
    c = carry0
    for t in range(18):
        keyp = 'P2F' if t == 0 else ('P2T' if t == 17 else ('P2L', t & 1))
        sq, c = p2_stage(t, keyp, c)
        if t < 17: assert [x[0] for x in c] == [x[0] for x in carry0]
        seqs.append(sq)
    assert not c
    res = resolve(seqs)
    emit(pro, res)
    emit(seqs[1], res)
    lab("L_p2_loop")
    emit(seqs[2], res)
    emit(seqs[3], res)
    e("s_sub_u32 s%d, s%d, 1" % (S_CNT, S_CNT))
    e("s_cmp_lg_u32 s%d, 0" % S_CNT)
    e("s_cbranch_scc1 L_p2_loop")
    e("s_mul_i32 s52, s%d, %d" % (S_WAVE, PQ))
    e("s_cmp_eq_u32 s%d, 3" % S_WAVE)
    e("s_cselect_b32 s53, %d, 0" % (P2_A - 3 * PQ))
    e("s_add_u32 s52, s52, s53")
    e("v_add_u32 v1, s52, v%d" % V_L16)
    e("s_xor_b32 s54, s%d, 1" % S_WAVE)
    e("s_mul_i32 s52, s54, %d" % PQ)
    e("s_cmp_eq_u32 s54, 3")
    e("s_cselect_b32 s53, %d, 0" % (P2_A - 3 * PQ))
    e("s_add_u32 s52, s52, s53")
    e("v_add_u32 v2, s52, v%d" % V_L16)
    e("v_add_u32 v3, %d, v%d" % (R3_O, V_L16))
    emit(seqs[18], res)
    NBAR['c'] += 1 + 17 + 1
    for x_ in stamp_ins(8): e(x_)
    for t in range(9):
        for m in range(2):
            f = t * 2 + m
            e("s_waitcnt lgkmcnt(%d)" % min(15, 17 - f))
            if t == 8 and m == 0: e("s_nop 7")
            for k in range(2):
                e("v_pk_add_f32 %s, %s, %s" % (vr(acc(t, m) + 2 * k, 2), vr(acc(t, m) + 2 * k, 2), vr(acc(t, 2 + m) + 2 * k, 2)))
    e("s_cmp_eq_u32 s%d, s%d" % (S_WAVE, S_KQ))
    e("s_cbranch_scc1 L_p3_own")
    e("s_lshl_b32 s52, s%d, 2" % S_MT)
    e("s_add_u32 s52, s52, s%d" % S_NQ)
    e("s_lshl_b32 s52, s52, 2")
    e("s_add_u32 s52, s52, s%d" % S_WAVE)
    e("s_lshl_b32 s52, s52, 2")
    e("s_add_u32 s52, s52, s%d" % S_KQ)
    e("s_mul_i32 s52, s52, %d" % PQ)
    e("s_add_u32 s52, s52, %d" % PART)
    for t in range(9):
        for m in range(2):
            f = t * 2 + m
            if not PBF16:
                if f % 4 == 0 and f: e("s_add_u32 s52, s52, 4096")
                e("buffer_store_dwordx4 %s, v%d, %s, s52 offen offset:%d sc1" % (vr(acc(t, m), 4), V_L16, sWS, (f % 4) * 1024))
            else:
                d = acc(t, 2) + 2 * m
                e("v_cvt_pk_bf16_f32 v%d, v%d, v%d" % (d, acc(t, m), acc(t, m) + 1))
                e("v_cvt_pk_bf16_f32 v%d, v%d, v%d" % (d + 1, acc(t, m) + 2, acc(t, m) + 3))
                if m == 1:
                    if t % 4 == 0 and t: e("s_add_u32 s52, s52, 4096")
                    e("buffer_store_dwordx4 %s, v%d, %s, s52 offen offset:%d sc1" % (vr(acc(t, 2), 4), V_L16, sWS, (t % 4) * 1024))
    e("s_lshl_b32 s52, s%d, 2" % S_MT)
    e("s_add_u32 s52, s52, s%d" % S_WAVE)
    e("s_lshl_b32 s52, s52, 2")
    e("s_add_u32 s52, s52, s%d" % S_NQ)
    e("s_lshl_b32 s52, s52, 7")
    e("s_lshl_b32 s53, s%d, 2" % S_KQ)
    e("s_add_u32 s52, s52, s53")
    e("s_add_u32 s52, s52, %d" % (FLAGOFF + 16))
    e("v_mov_b32 v1, 0")
    e("v_mov_b32 v2, 1")
    e("s_barrier")
    e("s_waitcnt vmcnt(0)")
    for x_ in stamp_ins(9): e(x_)
    e("s_mov_b64 exec, 1")
    e("buffer_store_dword v2, v1, %s, s52 offen sc1" % sWS)
    e("s_mov_b64 exec, -1")
    e("s_branch L_tail")
    lab("L_p3_own")
    for t in range(9):
        for m in range(2):
            e("ds_write_b128 v3, %s offset:%d" % (vr(acc(t, m), 4), (t * 2 + m) * 1024))
    e("s_waitcnt lgkmcnt(0)")
    e("s_barrier")
    NBAR['c'] += 1
    e("s_branch L_tail")

out.append("@@LOADER@@")
lab("L_loader")
class VM:
    def __init__(self): self.ops = []
    def issue(self, need): self.ops.append(need)
    def before_barrier(self, b):
        last = -1
        for i, n in enumerate(self.ops):
            if n <= b: last = i
        if last >= 0:
            n = len(self.ops) - 1 - last
            e("s_waitcnt vmcnt(%d)" % min(n, 63))
            self.ops = self.ops[last + 1:]
    def copy(self):
        v = VM(); v.ops = list(self.ops); return v

vm = VM()
def p1_issue(j):
    slot = (j % 3) * P1_SLOT
    e("s_add_u32 s61, s%d, s%d" % (S_XB, S_KX))
    e("s_add_u32 s62, s%d, s%d" % (S_WB_, S_KW))
    for i4 in range(4):
        e("s_add_u32 m0, s%d, %d" % (S_LX, slot + P1_X + i4 * 1024))
        e("s_add_u32 s63, s61, %d" % (i4 * 9216))
        e("buffer_load_dwordx4 v%d, %s, s63 offen lds" % (VXE if i4 % 2 == 0 else VXO, sX))
        vm.issue(j)
    for q in range(9):
        e("s_add_u32 m0, s%d, %d" % (S_LWW, slot + P1_W + q * 1024))
        e("s_nop 0")
        e("buffer_load_dwordx4 v%d, %s, s62 offen lds" % (VW1 + q, sW1))
        vm.issue(j)
    e("s_add_u32 s%d, s%d, 128" % (S_KX, S_KX))
    e("s_add_u32 s%d, s%d, %d" % (S_KW, S_KW, 64 * 9216))
    e("s_cmp_eq_u32 s%d, 1152" % S_KX)
    e("s_cselect_b32 s%d, 0, s%d" % (S_KX, S_KX))
    e("s_cselect_b32 s%d, 0, s%d" % (S_KW, S_KW))

NBAR['l'] = 0
def lbar(b, v):
    v.before_barrier(b)
    if b == 0:
        for x_ in stamp_ins(43): e(x_)
    if 11 <= b <= 22:
        for x_ in stamp_ins(b + 40): e(x_)
    e("s_barrier")
    for x_ in stamp_ins(1 + b): e(x_)

for x_ in stamp_ins(44): e(x_)
p1_issue(0)
if STARTM == 0: p1_issue(1)
for x_ in stamp_ins(42): e(x_)
for q in range(9):
    e("v_add_u32 v23, %d, v0" % (q * 64))
    e("v_mul_hi_u32 v24, v23, s53")
    e("v_mul_u32_u24 v25, 18, v24")
    e("v_sub_u32 v25, v23, v25")
    e("v_mul_u32_u24 v24, 1152, v24")
    e("v_lshl_add_u32 v%d, v25, 4, v24" % (VW2 + q))
S_SIS = 70
S_SLB = 80
S_HB = 84
for o in range(9):
    e("s_add_u32 s52, s%d, %d" % (S_ROT2, o))
    e("s_cmp_ge_u32 s52, 9")
    e("s_cselect_b32 s53, 9, 0")
    e("s_sub_u32 s52, s52, s53")
    e("s_mul_i32 s%d, s52, %d" % (S_SIS + o, 32 * 1152))
for si in range(4):
    e("s_add_u32 s52, s%d, %d" % (S_NQ, si))
    e("s_and_b32 s52, s52, 3")
    e("s_lshl_b32 s53, s%d, 2" % S_KQ)
    e("s_add_u32 s52, s52, s53")
    e("s_mul_i32 s53, s52, %d" % (288 * 1152))
    e("s_mul_i32 s54, s%d, 288" % S_NQ)
    e("s_add_u32 s%d, s53, s54" % (S_SLB + si))
    if si:
        e("s_lshl_b32 s53, s%d, 4" % S_MT)
        e("s_add_u32 s53, s53, s52")
        e("s_mul_i32 s%d, s53, %d" % (S_HB + si - 1, HBLK))
if STARTM == 1:
    e("s_waitcnt vmcnt(6)")
    p1_issue(1)
lbar(0, vm)
p1_issue(2)
for j in range(1, 7):
    lbar(j, vm)
    p1_issue(j + 2)
    if j == PFW2:
        e("s_lshl_b32 s61, s%d, 2" % S_ROT2)
        e("s_add_u32 s61, s61, s%d" % S_NQ)
        e("s_mul_i32 s61, s61, 41472")
        e("s_mul_i32 s62, s%d, 1327104" % S_KQ)
        e("s_add_u32 s61, s61, s62")
        e("s_mul_i32 s62, s%d, %d" % (S_LW, 81 * 128))
        e("s_add_u32 s61, s61, s62")
        e("v_lshlrev_b32 v28, 7, v0")
        e("v_min_u32 v29, 16, v0")
        e("v_lshlrev_b32 v29, 7, v29")
        e("buffer_load_dword v30, v28, %s, s61 offen" % sW2)
        vm.issue(1000)
        e("s_add_u32 s61, s61, 8192")
        e("buffer_load_dword v31, v29, %s, s61 offen" % sW2)
        vm.issue(1000)
lbar(7, vm)
for lw in range(1, 4):
    e("s_cmp_eq_u32 s%d, %d" % (S_LW, lw))
    e("s_cbranch_scc1 L_ld%d" % lw)

def need_of_step(s): return 10 + s // 2

def step_src(s):
    if s < 9: return 0, s
    i = s - 9
    return 1 + i % 3, i // 3
def issue_B(s, v):
    si, o = step_src(s)
    e("s_add_u32 s61, s%d, s%d" % (S_SLB + si, S_SIS + o))
    for q in range(9):
        e("s_mov_b32 m0, %d" % (P2_B + (s % 9) * P2_BS + q * 1024))
        e("s_nop 0")
        e("buffer_load_dwordx4 v%d, %s, s61 offen lds" % (VW2 + q, sW2))
        v.issue(need_of_step(s))
def issue_A(s, v):
    if NOA: return
    si, o = step_src(s)
    for half in range(2):
        e("s_mov_b32 m0, %d" % (P2_A + (s % 9) * P2_AS + half * 4096))
        e("s_add_u32 s61, s%d, %d" % (S_HB + si - 1, o * P2_AS + half * 4096))
        for q in range(4):
            e("buffer_load_dwordx4 v%d, %s, s61 offen offset:%d lds" % (V_L16, sWS, q * 1024))
            v.issue(need_of_step(s))

def poll_words(tag, srd, soff, lanes_mask_sreg_or_imm, thresh):
    e("s_mov_b32 s63, %d" % SPIN_MAX)
    lab("L_poll_%s" % tag)
    e("buffer_load_dword v24, v25, %s, %s offen sc1" % (srd, soff))
    e("s_waitcnt vmcnt(0)")
    e("v_cmp_le_u32 vcc, %d, v24" % thresh)
    e("s_sub_u32 s63, s63, 1")
    e("s_cmp_eq_u32 s63, 0")
    e("s_cbranch_scc1 L_polld_%s" % tag)
    e("s_and_b32 s64, vcc_lo, %s" % lanes_mask_sreg_or_imm)
    e("s_cmp_eq_u32 s64, %s" % lanes_mask_sreg_or_imm)
    e("s_cbranch_scc1 L_polld_%s" % tag)
    e("s_sleep 1")
    e("s_branch L_poll_%s" % tag)
    lab("L_polld_%s" % tag)

for lw in range(4):
    if lw: lab("L_ld%d" % lw)
    v = vm.copy()
    nb = 8
    for s in range(0, 5):
        if s % 4 == lw: issue_B(s, v)
    lbar(8, v); nb += 1
    for s in range(5, 9):
        if s % 4 == lw: issue_B(s, v)
    lbar(9, v); nb += 1
    if MODE == 'p1':
        e("s_waitcnt vmcnt(0)")
        e("s_branch L_end")
        NBAR['l'] = nb
        continue
    if lw == 0:
        e("v_and_b32 v25, 15, v0")
        e("v_lshlrev_b32 v25, 2, v25")
        e("s_lshl_b32 s62, s%d, 4" % S_MT)
        poll_words("init", sDBG, "s62", "1", 16)
        v.ops = []
        e("v_lshlrev_b32 v26, 7, v0")
        e("s_andn2_b32 s65, s%d, 0x180" % S_FLG)
        e("s_lshl_b32 s62, s%d, 2" % S_NQ)
        e("s_add_u32 s65, s65, s62")
        e("v_mov_b32 v27, 1")
    if lw in (1, 3):
        e("v_and_b32 v25, 15, v0")
        e("v_lshlrev_b32 v25, 2, v25")
    lbar(10, v); nb += 1
    polled = set()
    pend = []
    for t in range(17):
        lbar(11 + t, v); nb += 1
        if t == 0 and lw == 0:
            e("s_mov_b64 exec, 0xf")
            e("buffer_store_dword v27, v26, %s, s65 offen sc1" % sWS)
            e("s_mov_b64 exec, -1")
            v.issue(1000)
        for s_ in (2 * t + 9, 2 * t + 10):
            if s_ > 35: continue
            if lw == (0 if s_ % 2 == 0 else 2): issue_B(s_, v)
            if lw == (1 if s_ % 2 == 0 else 3):
                pend.append(s_)
        if lw in (1, 3) and t >= POLLT:
            if not polled:
                polled.add(1)
                e("s_lshl_b32 s61, 1, s%d" % S_NQ)
                e("s_xor_b32 s61, s61, 0xf")
                poll_words("a%d" % lw, sWS, "s%d" % S_FLG, "s61", 1)
                for x_ in stamp_ins(40): e(x_)
                v.ops = []
            for s_ in pend: issue_A(s_, v)
            pend = []
    lbar(28, v); nb += 1
    lbar(29, v); nb += 1
    NBAR['l'] = nb
    e("s_branch L_tail")

assert NBAR['c'] == NBAR['l'], NBAR

out.append("@@TAIL@@")
lab("L_tail")
TS = 1024 if PBF16 else 2048
e("v_and_b32 v25, 15, v0")
e("v_lshlrev_b32 v25, 2, v25")
e("s_lshl_b32 s52, s%d, 2" % S_MT)
e("s_add_u32 s52, s52, s%d" % S_NQ)
e("s_lshl_b32 s52, s52, 2")
e("s_add_u32 s52, s52, s%d" % S_KQ)
e("s_mul_i32 s52, s52, %d" % (4 * PQ))
e("s_add_u32 s52, s52, %d" % PART)
e("s_mul_i32 s53, s%d, %d" % (S_WAVE, TS))
e("s_add_u32 s52, s52, s53")
for k in range(3):
    e("s_add_u32 s54, s%d, %d" % (S_KQ, k + 1))
    e("s_and_b32 s54, s54, 3")
    e("s_mul_i32 s54, s54, %d" % PQ)
    e("s_add_u32 s%d, s52, s54" % (56 + k))
e("s_lshl_b32 s53, s%d, 11" % S_WAVE)
e("s_add_u32 s54, s53, %d" % R3_O)
e("v_add_u32 v1, s54, v%d" % V_L16)
e("v_and_b32 v2, 15, v0")
e("v_mul_u32_u24 v2, 1152, v2")
e("v_lshrrev_b32 v3, 4, v0")
e("v_lshl_add_u32 v2, v3, 3, v2")
e("s_lshl_b32 s54, s%d, 2" % S_MT)
e("s_add_u32 s54, s54, s%d" % S_KQ)
e("s_mul_i32 s54, s54, %d" % (32 * 1152))
e("s_mul_i32 s55, s%d, 288" % S_NQ)
e("s_add_u32 s59, s54, s55")
e("s_lshl_b32 s55, s%d, 5" % S_WAVE)
e("s_add_u32 s59, s59, s55")
e("s_lshl_b32 s61, 16, s%d" % S_KQ)
e("s_xor_b32 s61, s61, 0xf0")
def t_own(i):
    for m in range(2): e("ds_read_b128 %s, v1 offset:%d" % (vr(32 + i * 32 + 4 * m, 4), i * 16384 + m * 1024))
def t_load(i):
    b = 32 + i * 32 + 8
    for k in range(3):
        if i: e("s_add_u32 s%d, s%d, %d" % (56 + k, 56 + k, 8 * TS))
        if PBF16:
            e("buffer_load_dwordx4 %s, v%d, %s, s%d offen sc1" % (vr(b + 8 * k, 4), V_L16, sWS, 56 + k))
        else:
            for m in range(2):
                e("buffer_load_dwordx4 %s, v%d, %s, s%d offen offset:%d sc1" % (vr(b + 8 * k + 4 * m, 4), V_L16, sWS, 56 + k, m * 1024))
def t_fin(i):
    a = 32 + i * 32; b = a + 8
    for k in range(3):
        if PBF16:
            r = b + 8 * k
            for d in (3, 2, 1, 0):
                e("v_and_b32 v%d, 0xffff0000, v%d" % (r + 2 * d + 1, r + d))
                e("v_lshlrev_b32 v%d, 16, v%d" % (r + 2 * d, r + d))
        for hh in range(4):
            e("v_pk_add_f32 %s, %s, %s" % (vr(a + 2 * hh, 2), vr(a + 2 * hh, 2), vr(b + 8 * k + 2 * hh, 2)))
    for hh in range(4):
        e("v_cvt_pk_bf16_f32 v%d, v%d, v%d" % (b + hh, a + 2 * hh, a + 2 * hh + 1))
    if i: e("s_add_u32 s59, s59, 256")
    e("buffer_store_dwordx2 %s, v2, %s, s59 offen" % (vr(b, 2), sOUT))
    e("s_add_u32 s54, s59, %d" % (16 * 1152))
    e("buffer_store_dwordx2 %s, v2, %s, s54 offen" % (vr(b + 2, 2), sOUT))
t_own(0)
e("s_cmp_lg_u32 s%d, 0" % S_WAVE)
e("s_cbranch_scc1 L_tail_a")
t_own(1)
lab("L_tail_a")
poll_words("tail", sWS, "s%d" % S_FLG, "s61", 1)
for x_ in stamp_ins(41): e(x_)
t_load(0)
e("s_cmp_lg_u32 s%d, 0" % S_WAVE)
e("s_cbranch_scc1 L_tail_b")
t_load(1)
e("s_waitcnt vmcnt(0) lgkmcnt(0)")
t_fin(0)
t_fin(1)
e("s_branch L_tail2")
lab("L_tail_b")
e("s_waitcnt vmcnt(0) lgkmcnt(0)")
t_fin(0)
lab("L_tail2")
if STAMP:
    for x_ in stamp_ins(50): e(x_)
    e("s_lshl_b32 s52, s2, 3")
    e("s_add_u32 s52, s52, s%d" % S_WAVE)
    e("s_lshl_b32 s52, s52, 9")
    e("s_add_u32 s52, s52, %d" % STOFF)
    e("v_lshlrev_b32 v1, 2, v0")
    e("buffer_store_dword v111, v1, %s, s52 offen" % sWS)
    e("buffer_store_dword v110, v1, %s, s52 offen offset:256" % sWS)
lab("L_end")
e("s_endpgm")
out.append('.section .rodata,"a"')
out.append(".p2align 6")
out.append(".amdhsa_kernel %s" % KNAME)
out.append("  .amdhsa_next_free_vgpr 256")
out.append("  .amdhsa_next_free_sgpr 100")
out.append("  .amdhsa_accum_offset 256")
out.append("  .amdhsa_group_segment_fixed_size 0")
out.append("  .amdhsa_kernarg_size 48")
out.append("  .amdhsa_user_sgpr_count 2")
out.append("  .amdhsa_user_sgpr_kernarg_segment_ptr 1")
out.append("  .amdhsa_system_sgpr_workgroup_id_x 1")
out.append(".end_amdhsa_kernel")
ic, il, it = out.index("@@COMPUTE@@"), out.index("@@LOADER@@"), out.index("@@TAIL@@")
out = out[:ic] + out[il + 1:it] + out[ic + 1:il] + out[it + 1:]
print("\n".join(out))
```

```python
import sys

MODE = sys.argv[1] if len(sys.argv) > 1 else 'full'
KNAME = "standalone__dense_activation_silu__prompt_kernel"
STAMP = len(sys.argv) > 2 and sys.argv[2] == 'stamp'
STOFF = 128 * 1024 * 1024
import os
ROTM = int(os.environ.get('ROTM', '1'))
STARTM = int(os.environ.get('STARTM', '1'))
TOUCH = int(os.environ.get('TOUCH', '0'))
POLLT = int(os.environ.get('POLLT', '1'))
PF1 = int(os.environ.get('PF1', '0'))
FORCESLOW = int(os.environ.get('FORCESLOW', '0'))
HSC1 = 1
PBF16 = int(os.environ.get('PBF16', '1'))
CODEPF = int(os.environ.get('CODEPF', '1'))
NOHST = int(os.environ.get('NOHST', '0'))
NOA = int(os.environ.get('NOA', '0'))
PFW2 = int(os.environ.get('PFW2', '99'))
def stamp_ins(i):
    if not STAMP: return []
    r = ["s_memrealtime s[98:99]", "s_waitcnt lgkmcnt(0)", "v_writelane_b32 v111, s98, %d" % i]
    r += ["s_memtime s[98:99]", "s_waitcnt lgkmcnt(0)", "v_writelane_b32 v110, s98, %d" % i]
    return r

P1_SLOT = 53248
P1_X = 0
P1_W = 16384
P2_B = 0
P2_BS = 9216
P2_A = 82944
P2_AS = 8192
LDS_BYTES = 163840
HBLK = 73728
PART = 32 * 1024 * 1024
PQ = 18432
X_BYTES, W_BYTES, OUT_BYTES, WS_BYTES = 2359296, 5308416, 2359296, 268435456
R3_X = 0
R3_O = 82944 + 18432
SPIN_MAX = 400000
FLAGOFF = 64 * 1024 * 1024

out = []
def e(s): out.append("  " + s)
def lab(s): out.append(s + ":")

sX, sW1, sW2, sOUT, sDBG, sWS = "s[16:19]", "s[20:23]", "s[24:27]", "s[28:31]", "s[32:35]", "s[36:39]"
S_MT, S_KQ, S_NQ, S_WAVE, S_ROT1, S_ROT2, S_FS = 40, 41, 42, 43, 44, 45, 46
S_FLG = 96

V_LANE = 0
V_TRE, V_TRO, V_TR8, V_X0, V_X1 = 2, 3, 4, 5, 6
V_HLO, V_HHI, V_T2 = 7, 8, 9
V_L16 = 10
WB = 16
XB = 52
TMP = 84
ACC = 112
def acc(t, mi): return ACC + (t * 4 + mi) * 4
def wb(t): return WB + t * 4
def xb(par, mi): return XB + (par * 4 + mi) * 4
def vr(b, n): return "v[%d:%d]" % (b, b + n - 1)

out.append("; @launch grid=(256,1,1) block=(512,1,1) lds=%d" % LDS_BYTES)
out.append('.amdgcn_target "amdgcn-amd-amdhsa--gfx950"')
out.append(".text")
out.append(".globl %s" % KNAME)
out.append(".p2align 8")
out.append(".type %s,@function" % KNAME)
lab(KNAME)
e("s_cmp_ge_u32 s2, 256")
e("s_cbranch_scc1 L_end")
e("s_load_dwordx4 s[4:7], s[0:1], 0")
e("s_load_dwordx4 s[8:11], s[0:1], 16")
e("s_load_dwordx4 s[12:15], s[0:1], 32")
e("v_lshrrev_b32 v1, 6, v0")
e("v_and_b32 v0, 63, v0")
if STAMP:
    e("s_memrealtime s[98:99]")
    e("s_waitcnt lgkmcnt(0)")
    e("v_writelane_b32 v111, s98, 46")
e("s_and_b32 s47, s2, 7")
e("v_readfirstlane_b32 s%d, v1" % S_WAVE)
if CODEPF:
    e("s_getpc_b64 s[52:53]")
    lab("L_pc")
    e("s_cmp_ge_u32 s%d, 4" % S_WAVE)
    e("s_cbranch_scc1 L_nocpf")
    e("s_sub_u32 s52, s52, L_pc-%s" % KNAME)
    e("s_subb_u32 s53, s53, 0")
    e("s_lshl_b32 s54, s%d, 13" % S_WAVE)
    e("v_lshlrev_b32 v16, 7, v0")
    e("v_add_u32 v16, s54, v16")
    e("v_min_u32 v16, L_end-%s, v16" % KNAME)
    e("global_load_dword v100, v16, s[52:53]")
    lab("L_nocpf")
e("s_lshr_b32 s48, s2, 3")
e("s_lshr_b32 s%d, s47, 1" % S_KQ)
e("s_and_b32 s49, s47, 1")
e("s_lshl_b32 s49, s49, 3")
e("s_and_b32 s%d, s48, 7" % S_ROT2)
e("s_add_u32 s%d, s49, s%d" % (S_MT, S_ROT2))
e("s_lshr_b32 s%d, s48, 3" % S_NQ)
e("s_lshl_b32 s%d, s%d, 2" % (S_FS, S_KQ))
e("s_add_u32 s%d, s%d, s%d" % (S_FS, S_FS, S_NQ))
if ROTM == 1:
    e("s_add_u32 s%d, s%d, s%d" % (S_ROT1, S_NQ, S_ROT2))
    e("s_mul_i32 s47, s%d, 0x5556" % S_ROT1)
    e("s_lshr_b32 s47, s47, 16")
    e("s_mul_i32 s47, s47, 3")
    e("s_sub_u32 s%d, s%d, s47" % (S_ROT1, S_ROT1))
    e("s_mul_i32 s%d, s%d, 3" % (S_ROT1, S_ROT1))
elif ROTM == 0:
    e("s_mov_b32 s%d, 0" % S_ROT1)
elif ROTM == 2:
    e("s_add_u32 s%d, s%d, s%d" % (S_ROT1, S_NQ, S_ROT2))
    e("s_and_b32 s%d, s%d, 1" % (S_ROT1, S_ROT1))
    e("s_lshl_b32 s%d, s%d, 2" % (S_ROT1, S_ROT1))
e("s_lshl_b32 s47, s%d, 2" % S_MT)
e("s_add_u32 s47, s47, s%d" % S_KQ)
e("s_lshl_b32 s47, s47, 2")
e("s_add_u32 s47, s47, s%d" % S_NQ)
e("s_lshl_b32 s47, s47, 7")
e("s_add_u32 s%d, s47, %d" % (S_FLG, FLAGOFF))
e("v_lshlrev_b32 v%d, 4, v0" % V_L16)
for (base, p, n) in ((16, 4, X_BYTES), (20, 6, W_BYTES), (24, 8, W_BYTES), (28, 10, OUT_BYTES), (32, 12, 256), (36, 14, WS_BYTES)):
    e("s_mov_b32 s%d, %d" % (base + 2, n))
    e("s_mov_b32 s%d, 0x20000" % (base + 3))
S_LW = 50
VXE, VXO, VW1, VW2 = 2, 3, 32, 41
e("s_sub_u32 s%d, s%d, 4" % (S_LW, S_WAVE))
e("v_lshrrev_b32 v23, 3, v0")
e("v_and_b32 v24, 7, v0")
e("v_lshrrev_b32 v25, 4, v0")
e("v_xor_b32 v26, v24, v25")
e("v_xor_b32 v27, 4, v26")
e("v_mul_u32_u24 v23, 1152, v23")
e("v_lshl_add_u32 v%d, v26, 4, v23" % VXE)
e("v_lshl_add_u32 v%d, v27, 4, v23" % VXO)
e("s_mov_b32 s52, 0x71c71c8")
e("s_mov_b32 s53, 0xe38e38f")
e("s_mov_b32 s54, 9216")
for q in range(9):
    e("v_add_u32 v23, %d, v0" % (q * 64))
    e("v_mul_hi_u32 v24, v23, s52")
    e("v_mul_u32_u24 v25, 36, v24")
    e("v_sub_u32 v25, v23, v25")
    e("v_lshrrev_b32 v26, 2, v24")
    e("v_and_b32 v26, 2, v26")
    e("v_xor_b32 v25, v25, v26")
    e("v_mul_lo_u32 v24, v24, s54")
    e("v_lshl_add_u32 v%d, v25, 4, v24" % (VW1 + q))
S_XB, S_WB_, S_KX, S_KW, S_LX, S_LWW = 55, 56, 57, 58, 59, 60
e("s_mul_i32 s%d, s%d, 147456" % (S_XB, S_MT))
e("s_mul_i32 s52, s%d, %d" % (S_LW, 32 * 1152))
e("s_add_u32 s%d, s%d, s52" % (S_XB, S_XB))
e("s_mul_i32 s%d, s%d, 576" % (S_WB_, S_FS))
e("s_mul_i32 s52, s%d, %d" % (S_LW, 16 * 9216))
e("s_add_u32 s%d, s%d, s52" % (S_WB_, S_WB_))
e("s_lshl_b32 s%d, s%d, 7" % (S_KX, S_ROT1))
e("s_mul_i32 s%d, s%d, %d" % (S_KW, S_ROT1, 64 * 9216))
e("s_lshl_b32 s%d, s%d, 12" % (S_LX, S_LW))
e("s_mul_i32 s%d, s%d, 9216" % (S_LWW, S_LW))

e("s_waitcnt lgkmcnt(0)")
for (base, p, n) in ((16, 4, X_BYTES), (20, 6, W_BYTES), (24, 8, W_BYTES), (28, 10, OUT_BYTES), (32, 12, 256), (36, 14, WS_BYTES)):
    e("s_mov_b32 s%d, s%d" % (base, p))
    e("s_and_b32 s%d, s%d, 0xffff" % (base + 1, p + 1))
for x_ in stamp_ins(0): e(x_)
e("s_cmp_ge_u32 s%d, 4" % S_WAVE)
e("s_cbranch_scc0 L_compute")
out.append("@@COMPUTE@@")
lab("L_compute")

S_MH, S_FH = 50, 51
e("s_lshr_b32 s%d, s%d, 1" % (S_MH, S_WAVE))
e("s_and_b32 s%d, s%d, 1" % (S_FH, S_WAVE))
e("v_lshrrev_b32 v11, 4, v0")
e("v_bfe_u32 v12, v0, 2, 2")
e("v_and_b32 v13, 3, v0")
e("v_and_b32 v14, 1, v11")
e("v_and_b32 v15, 15, v0")
e("v_lshl_add_u32 v16, v11, 3, v12")
e("v_mul_u32_u24 v16, 576, v16")
e("v_lshl_add_u32 v16, v13, 3, v16")
e("v_lshlrev_b32 v17, 5, v14")
e("s_mul_i32 s52, s%d, 320" % S_FH)
e("s_add_u32 s52, s52, %d" % P1_W)
e("v_add_u32 v18, s52, v16")
e("v_add_u32 v%d, v18, v17" % V_TRE)
e("v_sub_u32 v%d, v18, v17" % V_TRO)
e("s_lshl_b32 s52, s%d, 5" % S_FH)
e("s_add_u32 s52, s52, %d" % (P1_W + 256))
e("s_lshl_b32 s53, s%d, 1" % S_FH)
e("s_sub_u32 s53, 1, s53")
e("v_mul_lo_u32 v18, v17, s53")
e("v_add3_u32 v%d, v16, v18, s52" % V_TR8)
e("v_lshrrev_b32 v17, 1, v15")
e("v_xor_b32 v18, v11, v17")
e("v_xor_b32 v19, 4, v18")
e("s_lshl_b32 s52, s%d, 13" % S_MH)
e("s_add_u32 s52, s52, %d" % P1_X)
e("v_lshlrev_b32 v20, 7, v15")
e("v_add_u32 v20, s52, v20")
e("v_lshl_add_u32 v%d, v18, 4, v20" % V_X0)
e("v_lshl_add_u32 v%d, v19, 4, v20" % V_X1)
e("v_lshl_add_u32 v16, v11, 2, v12")
e("v_mul_u32_u24 v16, 288, v16")
e("v_lshl_add_u32 v16, v13, 3, v16")
e("s_mul_i32 s52, s%d, %d" % (S_FH, P2_BS))
e("s_add_u32 s52, s52, %d" % P2_B)
e("v_add_u32 v%d, s52, v16" % V_T2)
e("s_lshl_b32 s52, s%d, 12" % S_MH)
e("s_mul_i32 s53, s%d, %d" % (S_FH, P2_AS))
e("s_add_u32 s52, s52, s53")
e("s_add_u32 s52, s52, %d" % P2_A)
e("s_lshl_b32 s53, s%d, 11" % S_FH)
e("s_add_u32 s54, s52, s53")
e("v_add_u32 v%d, s54, v%d" % (V_HLO, V_L16))
e("s_sub_u32 s54, s52, s53")
e("s_add_u32 s54, s54, 2048")
e("v_add_u32 v%d, s54, v%d" % (V_HHI, V_L16))
e("s_cmp_lg_u32 s%d, 0" % S_WAVE)
e("s_cbranch_scc1 L_noinit")
e("v_lshlrev_b32 v16, 2, v0")
e("v_mov_b32 v17, 0")
e("v_mov_b32 v18, 1")
e("s_mov_b64 exec, 0xffff")
e("buffer_store_dword v17, v16, %s, s%d offen sc1" % (sWS, S_FLG))
e("s_waitcnt vmcnt(0)")
e("s_mov_b64 exec, 1")
e("s_lshl_b32 s52, s%d, 4" % S_MT)
e("buffer_atomic_add v18, v17, %s, s52 offen sc1" % sDBG)
e("s_mov_b64 exec, -1")
lab("L_noinit")
for i in range(144):
    e("v_mov_b32 v%d, 0" % (ACC + i))

if PF1:
    e("v_and_b32 v16, 31, v0")
    e("v_mul_u32_u24 v16, 1152, v16")
    e("v_lshrrev_b32 v17, 5, v0")
    e("v_lshl_add_u32 v16, v17, 7, v16")
    e("s_mul_i32 s52, s%d, 147456" % S_MT)
    e("s_mul_i32 s53, s%d, %d" % (S_NQ, 32 * 1152))
    e("s_add_u32 s52, s52, s53")
    e("s_lshl_b32 s53, s%d, 8" % S_WAVE)
    e("s_add_u32 s53, s53, 256")
    e("s_min_u32 s53, s53, 896")
    e("s_add_u32 s52, s52, s53")
    e("buffer_load_dword v100, v16, %s, s52 offen" % sX)
    e("s_mov_b32 s52, 0x2aaaaaab")
    e("v_mul_hi_u32 v16, v0, s52")
    e("v_mul_u32_u24 v17, 6, v16")
    e("v_sub_u32 v17, v0, v17")
    e("v_lshlrev_b32 v17, 7, v17")
    e("v_min_u32 v17, 572, v17")
    e("v_min_u32 v16, 7, v16")
    e("s_mov_b32 s52, 9216")
    e("v_mul_lo_u32 v16, v16, s52")
    e("v_add_u32 v16, v16, v17")
    e("s_mul_i32 s52, s%d, 576" % S_FS)
    e("s_mul_i32 s53, s%d, %d" % (S_ROT2, 8 * 9216))
    e("s_add_u32 s52, s52, s53")
    e("s_add_u32 s53, s%d, 2" % S_WAVE)
    e("s_mul_i32 s53, s53, %d" % (64 * 9216))
    e("s_add_u32 s53, s52, s53")
    e("buffer_load_dword v101, v16, %s, s53 offen" % sW1)
    e("s_add_u32 s53, s%d, 6" % S_WAVE)
    e("s_min_u32 s53, s53, 8")
    e("s_mul_i32 s53, s53, %d" % (64 * 9216))
    e("s_add_u32 s53, s52, s53")
    e("buffer_load_dword v102, v16, %s, s53 offen" % sW1)

class Seq:
    def __init__(self): self.items = []
    def i(self, t): self.items.append(('i', t))
    def lds(self, t, tag): self.items.append(('lds', t, tag))
    def wait(self, tags, key): self.items.append(('wait', tags, key))
    def drain(self, t): self.items.append(('drain', t))

def w_reads_p1(t, ks, step):
    base = V_TR8 if t == 8 else (V_TRE if t % 2 == 0 else V_TRO)
    toff = 0 if t == 8 else t * 32
    r = []
    for h in range(2):
        r.append(("ds_read_b64_tr_b16 %s, v%d offset:%d" % (vr(wb(t) + 2 * h, 2), base, ks * 18432 + h * 2304 + toff), ('W', step, t)))
    return r
def x_reads_p1(ks, step):
    base = V_X0 if ks == 0 else V_X1
    return [("ds_read_b128 %s, v%d offset:%d" % (vr(xb(step & 1, mi), 4), base, mi * 2048), ('X', step)) for mi in range(4)]
def w_reads_p2(t, step):
    return [("ds_read_b64_tr_b16 %s, v%d offset:%d" % (vr(wb(t) + 2 * h, 2), V_T2, h * 4608 + t * 32), ('W', step, t)) for h in range(2)]
def x_reads_p2(step):
    r = []
    for mi in range(4):
        base = V_HLO if mi < 2 else V_HHI
        r.append(("ds_read_b128 %s, v%d offset:%d" % (vr(xb(step & 1, mi), 4), base, (mi & 1) * 1024), ('X', step)))
    return r

BAR_T = 2

def kstep(sq, keyp, step, carry, wnext, xnext, barrier=None, czero=False):
    q = list(carry)
    held = []
    blocked = barrier is not None
    if not blocked and xnext:
        pass
    for t in range(9):
        tags = [('W', step, t)] + ([('X', step)] if t == 0 else [])
        sq.wait(tags, (keyp, t))
        for mi in range(4):
            c = "0" if czero else vr(acc(t, mi), 4)
            sq.i("v_mfma_f32_16x16x32_bf16 %s, %s, %s, %s" % (vr(acc(t, mi), 4), vr(wb(t), 4), vr(xb(step & 1, mi), 4), c))
            if q and not (t == 8 and mi == 3):
                txt, tag = q.pop(0)
                sq.lds(txt, tag)
        new = wnext(t) if wnext else []
        if blocked:
            held += new
        else:
            q += new
        if t == (3 if barrier is None else BAR_T) and xnext and barrier is None:
            q += xnext
        if barrier is not None and t == BAR_T:
            assert not q, "carry not drained before barrier"
            sq.drain("s_waitcnt lgkmcnt(0)")
            for b in barrier: sq.i(b)
            blocked = False
            q += (xnext or []) + held
            held = []
    return q

def resolve(seqs):
    issued = []
    res = {}
    for sq in seqs:
        for it in sq.items:
            if it[0] == 'lds':
                issued.append(it[2])
            elif it[0] == 'drain':
                issued = []
            elif it[0] == 'wait':
                tags = it[1]
                last = -1
                for idx, tg in enumerate(issued):
                    if tg in tags: last = idx
                n = 15 if last < 0 else min(15, len(issued) - 1 - last)
                res[it[2]] = min(res.get(it[2], 15), n)
    return res

def emit(sq, res):
    for it in sq.items:
        if it[0] in ('i', 'drain'): e(it[1])
        elif it[0] == 'lds': e(it[1])
        else: e("s_waitcnt lgkmcnt(%d)" % res[it[2]])

NBAR = {'c': 0}
def cbar(): NBAR['c'] += 1

S_SLOT, S_DELTA, S_CNT = 55, 56, 57
adv1 = ["s_barrier",
        "s_add_u32 s%d, s%d, 1" % (S_SLOT, S_SLOT),
        "s_cmp_eq_u32 s%d, 3" % S_SLOT,
        "s_cselect_b32 s%d, s71, s70" % S_DELTA,
        "s_cselect_b32 s%d, 0, s%d" % (S_SLOT, S_SLOT)] + \
       ["v_add_u32 v%d, s%d, v%d" % (r, S_DELTA, r) for r in (V_TRE, V_TRO, V_TR8, V_X0, V_X1)]

def p1_stage(j, keyp, carry, last):
    sq = Seq()
    s0, s1 = 2 * j, 2 * j + 1
    c = kstep(sq, (keyp, 0), s0, carry, lambda t: w_reads_p1(t, 1, s1), x_reads_p1(1, s1))
    if not last:
        c = kstep(sq, (keyp, 1), s1, c, lambda t: w_reads_p1(t, 0, s1 + 1), x_reads_p1(0, s1 + 1), barrier=adv1)
    else:
        c = kstep(sq, (keyp, 1), s1, c, None, None, barrier=["s_barrier"])
    return sq, c

pro = Seq()
pro.i("s_mov_b32 s%d, 0" % S_SLOT)
pro.i("s_mov_b32 s%d, 8" % S_CNT)
pro.i("s_mov_b32 s70, %d" % P1_SLOT)
pro.i("s_mov_b32 s71, %d" % ((-2 * P1_SLOT) & 0xffffffff))
pro.i("s_mov_b32 s72, %d" % (2 * P2_AS))
pro.i("s_mov_b32 s73, %d" % ((-7 * P2_AS) & 0xffffffff))
pro.i("s_mov_b32 s74, %d" % (2 * P2_BS))
pro.i("s_mov_b32 s75, %d" % ((-7 * P2_BS) & 0xffffffff))
for x_ in stamp_ins(45): pro.i(x_)
pro.i("s_barrier")
for x_ in stamp_ins(1): pro.i(x_)
for (txt, tag) in x_reads_p1(0, 0): pro.lds(txt, tag)
for t in range(8):
    for (txt, tag) in w_reads_p1(t, 0, 0): pro.lds(txt, tag)
carry0 = w_reads_p1(8, 0, 0)
seqs = [pro]
c = carry0
for j in range(8):
    sq, c = p1_stage(j, 'P1L', c, False)
    assert [x[0] for x in c] == [x[0] for x in carry0], (c, carry0)
    seqs.append(sq)
sq_last, c = p1_stage(8, 'P1T', c, True)
assert not c
seqs.append(sq_last)
res = resolve(seqs)
emit(pro, res)
lab("L_p1_loop")
emit(seqs[1], res)
e("s_sub_u32 s%d, s%d, 1" % (S_CNT, S_CNT))
e("s_cmp_lg_u32 s%d, 0" % S_CNT)
e("s_cbranch_scc1 L_p1_loop")
emit(sq_last, res)
NBAR['c'] += 1 + 8 + 1
for x_ in stamp_ins(2): e(x_)

S_SO = 60
S_GB = 65
for p in range(5):
    if p < 4:
        e("s_mul_i32 s52, s%d, 5" % S_FH)
        e("s_add_u32 s52, s52, %d" % (p + 9))
    else:
        e("s_mov_b32 s52, %d" % (4 + 9))
    e("s_sub_u32 s52, s52, s%d" % S_ROT2)
    e("s_cmp_ge_u32 s52, 9")
    e("s_cselect_b32 s53, 9, 0")
    e("s_sub_u32 s52, s52, s53")
    e("s_lshl_b32 s52, s52, 13")
    e("s_lshl_b32 s53, s%d, 12" % S_MH)
    e("s_add_u32 s%d, s52, s53" % (S_SO + p))
e("s_lshl_b32 s52, s%d, 3" % S_FH)
e("s_add_u32 s%d, s%d, s52" % (S_SO + 4, S_SO + 4))
e("s_lshl_b32 s52, s%d, 4" % S_MT)
e("s_add_u32 s52, s52, s%d" % S_FS)
e("s_mul_i32 s%d, s52, %d" % (S_GB, HBLK))
e("s_mov_b32 s66, 0xbfb8aa3b")
e("s_mov_b32 s67, 0xbfb8aa3b")
e("s_mov_b32 s68, 1.0")
e("s_mov_b32 s69, 1.0")

def silu_group(regs, T, P):
    n = len(regs)
    for k, a in enumerate(regs):
        for hh in range(2):
            e("v_pk_mul_f32 %s, %s, s[66:67]" % (vr(T + 4 * k + 2 * hh, 2), vr(a + 2 * hh, 2)))
    for k in range(4 * n):
        e("v_exp_f32 v%d, v%d" % (T + k, T + k))
    for k in range(2 * n):
        e("v_pk_add_f32 %s, %s, s[68:69]" % (vr(T + 2 * k, 2), vr(T + 2 * k, 2)))
    for k in range(4 * n):
        e("v_rcp_f32 v%d, v%d" % (T + k, T + k))
    for k, a in enumerate(regs):
        for hh in range(2):
            e("v_pk_mul_f32 %s, %s, %s" % (vr(T + 4 * k + 2 * hh, 2), vr(a + 2 * hh, 2), vr(T + 4 * k + 2 * hh, 2)))
    for k in range(2 * n):
        e("v_cvt_pk_bf16_f32 v%d, v%d, v%d" % (P + k, T + 2 * k, T + 2 * k + 1))

grp = 0
for p in range(5):
    e("s_add_u32 s53, s%d, %d" % (S_SO + p, P2_A))
    e("v_add_u32 v1, s53, v%d" % V_L16)
    e("s_add_u32 s52, s%d, s%d" % (S_GB, S_SO + p))
    for mi in range(4):
        T = 16 + (grp % 3) * 8
        P = 48 + (grp % 4) * 4
        grp += 1
        if p < 4:
            silu_group([acc(2 * p, mi), acc(2 * p + 1, mi)], T, P)
            e("ds_write_b128 v1, %s offset:%d" % (vr(P, 4), mi * 1024))
            if not NOHST: e("buffer_store_dwordx4 %s, v%d, %s, s52 offen offset:%d%s" % (vr(P, 4), V_L16, sWS, mi * 1024, " sc1" if HSC1 else ""))
        else:
            silu_group([acc(8, mi)], T, P)
            e("ds_write_b64 v1, %s offset:%d" % (vr(P, 2), mi * 1024))
            e("buffer_store_dwordx2 %s, v%d, %s, s52 offen offset:%d%s" % (vr(P, 2), V_L16, sWS, mi * 1024, " sc1" if HSC1 else ""))

if MODE == 'p1':
    e("s_waitcnt vmcnt(0) lgkmcnt(0)")
    e("s_branch L_end")
else:
    S_DA, S_DB = 58, 59
    def adv2(first):
        l = []
        if first: l.append("s_waitcnt vmcnt(0)")
        if first: l += stamp_ins(5)
        l += ["s_barrier"] + (stamp_ins(6) if first else []) + [
              "s_add_u32 s%d, s%d, 2" % (S_SLOT, S_SLOT),
              "s_cmp_ge_u32 s%d, 9" % S_SLOT,
              "s_cselect_b32 s%d, s73, s72" % S_DA,
              "s_cselect_b32 s%d, s75, s74" % S_DB,
              "s_cselect_b32 s52, 9, 0",
              "s_sub_u32 s%d, s%d, s52" % (S_SLOT, S_SLOT),
              "v_add_u32 v%d, s%d, v%d" % (V_T2, S_DB, V_T2),
              "v_add_u32 v%d, s%d, v%d" % (V_HLO, S_DA, V_HLO),
              "v_add_u32 v%d, s%d, v%d" % (V_HHI, S_DA, V_HHI)]
        return l
    def p2_stage(t, keyp, carry):
        sq = Seq()
        if t < 17:
            c = kstep(sq, keyp, t, carry, lambda tt: w_reads_p2(tt, t + 1), x_reads_p2(t + 1), barrier=adv2(t == 0), czero=(t == 0))
        else:
            step = t
            def mf(tt, mi):
                sq.i("v_mfma_f32_16x16x32_bf16 %s, %s, %s, %s" % (vr(acc(tt, mi), 4), vr(wb(tt), 4), vr(xb(step & 1, mi), 4), vr(acc(tt, mi), 4)))
            q = list(carry)
            for tt in range(9):
                sq.wait([('W', step, tt)] + ([('X', step)] if tt == 0 else []), (keyp, tt))
                for mi in (2, 3):
                    mf(tt, mi)
                    if q:
                        txt, tag = q.pop(0); sq.lds(txt, tag)
            wr = ["ds_write_b128 v1, %s offset:%d" % (vr(acc(tt, 2 + m), 4), (tt * 2 + m) * 1024) for tt in range(9) for m in range(2)]
            rd = ["ds_read_b128 %s, v2 offset:%d" % (vr(acc(tt, 2 + m), 4), (tt * 2 + m) * 1024) for tt in range(9) for m in range(2)]
            k = 0
            for tt in range(9):
                for mi in (0, 1):
                    mf(tt, mi)
                    if k < 9:
                        sq.lds(wr[2 * k], ('WR',)); sq.lds(wr[2 * k + 1], ('WR',))
                    else:
                        sq.lds(rd[2 * (k - 9)], ('RD',)); sq.lds(rd[2 * (k - 9) + 1], ('RD',))
                    k += 1
                    if k == 9:
                        sq.drain("s_waitcnt lgkmcnt(0)")
                        sq.i("s_barrier")
            c = []
        return sq, c
    pro = Seq()
    pro.i("s_mov_b32 s%d, s%d" % (S_SLOT, S_FH))
    pro.i("s_mov_b32 s%d, 8" % S_CNT)
    pro.drain("s_waitcnt lgkmcnt(0)")
    for x_ in stamp_ins(3): pro.i(x_)
    pro.i("s_barrier")
    for x_ in stamp_ins(4): pro.i(x_)
    for (txt, tag) in x_reads_p2(0): pro.lds(txt, tag)
    for t in range(8):
        for (txt, tag) in w_reads_p2(t, 0): pro.lds(txt, tag)
    carry0 = w_reads_p2(8, 0)
    seqs = [pro]
    c = carry0
    for t in range(18):
        keyp = 'P2F' if t == 0 else ('P2T' if t == 17 else ('P2L', t & 1))
        sq, c = p2_stage(t, keyp, c)
        if t < 17: assert [x[0] for x in c] == [x[0] for x in carry0]
        seqs.append(sq)
    assert not c
    res = resolve(seqs)
    emit(pro, res)
    emit(seqs[1], res)
    lab("L_p2_loop")
    emit(seqs[2], res)
    emit(seqs[3], res)
    e("s_sub_u32 s%d, s%d, 1" % (S_CNT, S_CNT))
    e("s_cmp_lg_u32 s%d, 0" % S_CNT)
    e("s_cbranch_scc1 L_p2_loop")
    e("s_mul_i32 s52, s%d, %d" % (S_WAVE, PQ))
    e("s_cmp_eq_u32 s%d, 3" % S_WAVE)
    e("s_cselect_b32 s53, %d, 0" % (P2_A - 3 * PQ))
    e("s_add_u32 s52, s52, s53")
    e("v_add_u32 v1, s52, v%d" % V_L16)
    e("s_xor_b32 s54, s%d, 1" % S_WAVE)
    e("s_mul_i32 s52, s54, %d" % PQ)
    e("s_cmp_eq_u32 s54, 3")
    e("s_cselect_b32 s53, %d, 0" % (P2_A - 3 * PQ))
    e("s_add_u32 s52, s52, s53")
    e("v_add_u32 v2, s52, v%d" % V_L16)
    e("v_add_u32 v3, %d, v%d" % (R3_O, V_L16))
    emit(seqs[18], res)
    NBAR['c'] += 1 + 17 + 1
    for x_ in stamp_ins(8): e(x_)
    for t in range(9):
        for m in range(2):
            f = t * 2 + m
            e("s_waitcnt lgkmcnt(%d)" % min(15, 17 - f))
            if t == 8 and m == 0: e("s_nop 7")
            for k in range(2):
                e("v_pk_add_f32 %s, %s, %s" % (vr(acc(t, m) + 2 * k, 2), vr(acc(t, m) + 2 * k, 2), vr(acc(t, 2 + m) + 2 * k, 2)))
    e("s_cmp_eq_u32 s%d, s%d" % (S_WAVE, S_KQ))
    e("s_cbranch_scc1 L_p3_own")
    e("s_lshl_b32 s52, s%d, 2" % S_MT)
    e("s_add_u32 s52, s52, s%d" % S_NQ)
    e("s_lshl_b32 s52, s52, 2")
    e("s_add_u32 s52, s52, s%d" % S_WAVE)
    e("s_lshl_b32 s52, s52, 2")
    e("s_add_u32 s52, s52, s%d" % S_KQ)
    e("s_mul_i32 s52, s52, %d" % PQ)
    e("s_add_u32 s52, s52, %d" % PART)
    for t in range(9):
        for m in range(2):
            f = t * 2 + m
            if not PBF16:
                if f % 4 == 0 and f: e("s_add_u32 s52, s52, 4096")
                e("buffer_store_dwordx4 %s, v%d, %s, s52 offen offset:%d sc1" % (vr(acc(t, m), 4), V_L16, sWS, (f % 4) * 1024))
            else:
                d = acc(t, 2) + 2 * m
                e("v_cvt_pk_bf16_f32 v%d, v%d, v%d" % (d, acc(t, m), acc(t, m) + 1))
                e("v_cvt_pk_bf16_f32 v%d, v%d, v%d" % (d + 1, acc(t, m) + 2, acc(t, m) + 3))
                if m == 1:
                    if t % 4 == 0 and t: e("s_add_u32 s52, s52, 4096")
                    e("buffer_store_dwordx4 %s, v%d, %s, s52 offen offset:%d sc1" % (vr(acc(t, 2), 4), V_L16, sWS, (t % 4) * 1024))
    e("s_lshl_b32 s52, s%d, 2" % S_MT)
    e("s_add_u32 s52, s52, s%d" % S_WAVE)
    e("s_lshl_b32 s52, s52, 2")
    e("s_add_u32 s52, s52, s%d" % S_NQ)
    e("s_lshl_b32 s52, s52, 7")
    e("s_lshl_b32 s53, s%d, 2" % S_KQ)
    e("s_add_u32 s52, s52, s53")
    e("s_add_u32 s52, s52, %d" % (FLAGOFF + 16))
    e("v_mov_b32 v1, 0")
    e("v_mov_b32 v2, 1")
    e("s_barrier")
    e("s_waitcnt vmcnt(0)")
    for x_ in stamp_ins(9): e(x_)
    e("s_mov_b64 exec, 1")
    e("buffer_store_dword v2, v1, %s, s52 offen sc1" % sWS)
    e("s_mov_b64 exec, -1")
    e("s_branch L_tail")
    lab("L_p3_own")
    for t in range(9):
        for m in range(2):
            e("ds_write_b128 v3, %s offset:%d" % (vr(acc(t, m), 4), (t * 2 + m) * 1024))
    e("s_waitcnt lgkmcnt(0)")
    e("s_barrier")
    NBAR['c'] += 1
    e("s_branch L_tail")

out.append("@@LOADER@@")
lab("L_loader")
class VM:
    def __init__(self): self.ops = []
    def issue(self, need): self.ops.append(need)
    def before_barrier(self, b):
        last = -1
        for i, n in enumerate(self.ops):
            if n <= b: last = i
        if last >= 0:
            n = len(self.ops) - 1 - last
            e("s_waitcnt vmcnt(%d)" % min(n, 63))
            self.ops = self.ops[last + 1:]
    def copy(self):
        v = VM(); v.ops = list(self.ops); return v

vm = VM()
def p1_issue(j):
    slot = (j % 3) * P1_SLOT
    e("s_add_u32 s61, s%d, s%d" % (S_XB, S_KX))
    e("s_add_u32 s62, s%d, s%d" % (S_WB_, S_KW))
    for i4 in range(4):
        e("s_add_u32 m0, s%d, %d" % (S_LX, slot + P1_X + i4 * 1024))
        e("s_add_u32 s63, s61, %d" % (i4 * 9216))
        e("buffer_load_dwordx4 v%d, %s, s63 offen lds" % (VXE if i4 % 2 == 0 else VXO, sX))
        vm.issue(j)
    for q in range(9):
        e("s_add_u32 m0, s%d, %d" % (S_LWW, slot + P1_W + q * 1024))
        e("s_nop 0")
        e("buffer_load_dwordx4 v%d, %s, s62 offen lds" % (VW1 + q, sW1))
        vm.issue(j)
    e("s_add_u32 s%d, s%d, 128" % (S_KX, S_KX))
    e("s_add_u32 s%d, s%d, %d" % (S_KW, S_KW, 64 * 9216))
    e("s_cmp_eq_u32 s%d, 1152" % S_KX)
    e("s_cselect_b32 s%d, 0, s%d" % (S_KX, S_KX))
    e("s_cselect_b32 s%d, 0, s%d" % (S_KW, S_KW))

NBAR['l'] = 0
def lbar(b, v):
    v.before_barrier(b)
    if b == 0:
        for x_ in stamp_ins(43): e(x_)
    if 11 <= b <= 22:
        for x_ in stamp_ins(b + 40): e(x_)
    e("s_barrier")
    for x_ in stamp_ins(1 + b): e(x_)

for x_ in stamp_ins(44): e(x_)
p1_issue(0)
if STARTM == 0: p1_issue(1)
for x_ in stamp_ins(42): e(x_)
for q in range(9):
    e("v_add_u32 v23, %d, v0" % (q * 64))
    e("v_mul_hi_u32 v24, v23, s53")
    e("v_mul_u32_u24 v25, 18, v24")
    e("v_sub_u32 v25, v23, v25")
    e("v_mul_u32_u24 v24, 1152, v24")
    e("v_lshl_add_u32 v%d, v25, 4, v24" % (VW2 + q))
S_SIS = 70
S_SLB = 80
S_HB = 84
for o in range(9):
    e("s_add_u32 s52, s%d, %d" % (S_ROT2, o))
    e("s_cmp_ge_u32 s52, 9")
    e("s_cselect_b32 s53, 9, 0")
    e("s_sub_u32 s52, s52, s53")
    e("s_mul_i32 s%d, s52, %d" % (S_SIS + o, 32 * 1152))
for si in range(4):
    e("s_add_u32 s52, s%d, %d" % (S_NQ, si))
    e("s_and_b32 s52, s52, 3")
    e("s_lshl_b32 s53, s%d, 2" % S_KQ)
    e("s_add_u32 s52, s52, s53")
    e("s_mul_i32 s53, s52, %d" % (288 * 1152))
    e("s_mul_i32 s54, s%d, 288" % S_NQ)
    e("s_add_u32 s%d, s53, s54" % (S_SLB + si))
    if si:
        e("s_lshl_b32 s53, s%d, 4" % S_MT)
        e("s_add_u32 s53, s53, s52")
        e("s_mul_i32 s%d, s53, %d" % (S_HB + si - 1, HBLK))
if STARTM == 1:
    e("s_waitcnt vmcnt(6)")
    p1_issue(1)
lbar(0, vm)
p1_issue(2)
for j in range(1, 7):
    lbar(j, vm)
    p1_issue(j + 2)
    if j == PFW2:
        e("s_lshl_b32 s61, s%d, 2" % S_ROT2)
        e("s_add_u32 s61, s61, s%d" % S_NQ)
        e("s_mul_i32 s61, s61, 41472")
        e("s_mul_i32 s62, s%d, 1327104" % S_KQ)
        e("s_add_u32 s61, s61, s62")
        e("s_mul_i32 s62, s%d, %d" % (S_LW, 81 * 128))
        e("s_add_u32 s61, s61, s62")
        e("v_lshlrev_b32 v28, 7, v0")
        e("v_min_u32 v29, 16, v0")
        e("v_lshlrev_b32 v29, 7, v29")
        e("buffer_load_dword v30, v28, %s, s61 offen" % sW2)
        vm.issue(1000)
        e("s_add_u32 s61, s61, 8192")
        e("buffer_load_dword v31, v29, %s, s61 offen" % sW2)
        vm.issue(1000)
lbar(7, vm)
for lw in range(1, 4):
    e("s_cmp_eq_u32 s%d, %d" % (S_LW, lw))
    e("s_cbranch_scc1 L_ld%d" % lw)

def need_of_step(s): return 10 + s // 2

def step_src(s):
    if s < 9: return 0, s
    i = s - 9
    return 1 + i % 3, i // 3
def issue_B(s, v):
    si, o = step_src(s)
    e("s_add_u32 s61, s%d, s%d" % (S_SLB + si, S_SIS + o))
    for q in range(9):
        e("s_mov_b32 m0, %d" % (P2_B + (s % 9) * P2_BS + q * 1024))
        e("s_nop 0")
        e("buffer_load_dwordx4 v%d, %s, s61 offen lds" % (VW2 + q, sW2))
        v.issue(need_of_step(s))
def issue_A(s, v):
    if NOA: return
    si, o = step_src(s)
    for half in range(2):
        e("s_mov_b32 m0, %d" % (P2_A + (s % 9) * P2_AS + half * 4096))
        e("s_add_u32 s61, s%d, %d" % (S_HB + si - 1, o * P2_AS + half * 4096))
        for q in range(4):
            e("buffer_load_dwordx4 v%d, %s, s61 offen offset:%d lds" % (V_L16, sWS, q * 1024))
            v.issue(need_of_step(s))

def poll_words(tag, srd, soff, lanes_mask_sreg_or_imm, thresh):
    e("s_mov_b32 s63, %d" % SPIN_MAX)
    lab("L_poll_%s" % tag)
    e("buffer_load_dword v24, v25, %s, %s offen sc1" % (srd, soff))
    e("s_waitcnt vmcnt(0)")
    e("v_cmp_le_u32 vcc, %d, v24" % thresh)
    e("s_sub_u32 s63, s63, 1")
    e("s_cmp_eq_u32 s63, 0")
    e("s_cbranch_scc1 L_polld_%s" % tag)
    e("s_and_b32 s64, vcc_lo, %s" % lanes_mask_sreg_or_imm)
    e("s_cmp_eq_u32 s64, %s" % lanes_mask_sreg_or_imm)
    e("s_cbranch_scc1 L_polld_%s" % tag)
    e("s_sleep 1")
    e("s_branch L_poll_%s" % tag)
    lab("L_polld_%s" % tag)

for lw in range(4):
    if lw: lab("L_ld%d" % lw)
    v = vm.copy()
    nb = 8
    for s in range(0, 5):
        if s % 4 == lw: issue_B(s, v)
    lbar(8, v); nb += 1
    for s in range(5, 9):
        if s % 4 == lw: issue_B(s, v)
    lbar(9, v); nb += 1
    if MODE == 'p1':
        e("s_waitcnt vmcnt(0)")
        e("s_branch L_end")
        NBAR['l'] = nb
        continue
    if lw == 0:
        e("v_and_b32 v25, 15, v0")
        e("v_lshlrev_b32 v25, 2, v25")
        e("s_lshl_b32 s62, s%d, 4" % S_MT)
        poll_words("init", sDBG, "s62", "1", 16)
        v.ops = []
        e("v_lshlrev_b32 v26, 7, v0")
        e("s_andn2_b32 s65, s%d, 0x180" % S_FLG)
        e("s_lshl_b32 s62, s%d, 2" % S_NQ)
        e("s_add_u32 s65, s65, s62")
        e("v_mov_b32 v27, 1")
    if lw in (1, 3):
        e("v_and_b32 v25, 15, v0")
        e("v_lshlrev_b32 v25, 2, v25")
    lbar(10, v); nb += 1
    polled = set()
    pend = []
    for t in range(17):
        lbar(11 + t, v); nb += 1
        if t == 0 and lw == 0:
            e("s_mov_b64 exec, 0xf")
            e("buffer_store_dword v27, v26, %s, s65 offen sc1" % sWS)
            e("s_mov_b64 exec, -1")
            v.issue(1000)
        for s_ in (2 * t + 9, 2 * t + 10):
            if s_ > 35: continue
            if lw == (0 if s_ % 2 == 0 else 2): issue_B(s_, v)
            if lw == (1 if s_ % 2 == 0 else 3):
                pend.append(s_)
        if lw in (1, 3) and t >= POLLT:
            if not polled:
                polled.add(1)
                e("s_lshl_b32 s61, 1, s%d" % S_NQ)
                e("s_xor_b32 s61, s61, 0xf")
                poll_words("a%d" % lw, sWS, "s%d" % S_FLG, "s61", 1)
                for x_ in stamp_ins(40): e(x_)
                v.ops = []
            for s_ in pend: issue_A(s_, v)
            pend = []
    lbar(28, v); nb += 1
    lbar(29, v); nb += 1
    NBAR['l'] = nb
    e("s_branch L_tail")

assert NBAR['c'] == NBAR['l'], NBAR

out.append("@@TAIL@@")
lab("L_tail")
TS = 1024 if PBF16 else 2048
e("v_and_b32 v25, 15, v0")
e("v_lshlrev_b32 v25, 2, v25")
e("s_lshl_b32 s52, s%d, 2" % S_MT)
e("s_add_u32 s52, s52, s%d" % S_NQ)
e("s_lshl_b32 s52, s52, 2")
e("s_add_u32 s52, s52, s%d" % S_KQ)
e("s_mul_i32 s52, s52, %d" % (4 * PQ))
e("s_add_u32 s52, s52, %d" % PART)
e("s_mul_i32 s53, s%d, %d" % (S_WAVE, TS))
e("s_add_u32 s52, s52, s53")
for k in range(3):
    e("s_add_u32 s54, s%d, %d" % (S_KQ, k + 1))
    e("s_and_b32 s54, s54, 3")
    e("s_mul_i32 s54, s54, %d" % PQ)
    e("s_add_u32 s%d, s52, s54" % (56 + k))
e("s_lshl_b32 s53, s%d, 11" % S_WAVE)
e("s_add_u32 s54, s53, %d" % R3_O)
e("v_add_u32 v1, s54, v%d" % V_L16)
e("v_and_b32 v2, 15, v0")
e("v_mul_u32_u24 v2, 1152, v2")
e("v_lshrrev_b32 v3, 4, v0")
e("v_lshl_add_u32 v2, v3, 3, v2")
e("s_lshl_b32 s54, s%d, 2" % S_MT)
e("s_add_u32 s54, s54, s%d" % S_KQ)
e("s_mul_i32 s54, s54, %d" % (32 * 1152))
e("s_mul_i32 s55, s%d, 288" % S_NQ)
e("s_add_u32 s59, s54, s55")
e("s_lshl_b32 s55, s%d, 5" % S_WAVE)
e("s_add_u32 s59, s59, s55")
e("s_lshl_b32 s61, 16, s%d" % S_KQ)
e("s_xor_b32 s61, s61, 0xf0")
def t_own(i):
    for m in range(2): e("ds_read_b128 %s, v1 offset:%d" % (vr(32 + i * 32 + 4 * m, 4), i * 16384 + m * 1024))
def t_load(i):
    b = 32 + i * 32 + 8
    for k in range(3):
        if i: e("s_add_u32 s%d, s%d, %d" % (56 + k, 56 + k, 8 * TS))
        if PBF16:
            e("buffer_load_dwordx4 %s, v%d, %s, s%d offen sc1" % (vr(b + 8 * k, 4), V_L16, sWS, 56 + k))
        else:
            for m in range(2):
                e("buffer_load_dwordx4 %s, v%d, %s, s%d offen offset:%d sc1" % (vr(b + 8 * k + 4 * m, 4), V_L16, sWS, 56 + k, m * 1024))
def t_fin(i):
    a = 32 + i * 32; b = a + 8
    for k in range(3):
        if PBF16:
            r = b + 8 * k
            for d in (3, 2, 1, 0):
                e("v_and_b32 v%d, 0xffff0000, v%d" % (r + 2 * d + 1, r + d))
                e("v_lshlrev_b32 v%d, 16, v%d" % (r + 2 * d, r + d))
        for hh in range(4):
            e("v_pk_add_f32 %s, %s, %s" % (vr(a + 2 * hh, 2), vr(a + 2 * hh, 2), vr(b + 8 * k + 2 * hh, 2)))
    for hh in range(4):
        e("v_cvt_pk_bf16_f32 v%d, v%d, v%d" % (b + hh, a + 2 * hh, a + 2 * hh + 1))
    if i: e("s_add_u32 s59, s59, 256")
    e("buffer_store_dwordx2 %s, v2, %s, s59 offen" % (vr(b, 2), sOUT))
    e("s_add_u32 s54, s59, %d" % (16 * 1152))
    e("buffer_store_dwordx2 %s, v2, %s, s54 offen" % (vr(b + 2, 2), sOUT))
t_own(0)
e("s_cmp_lg_u32 s%d, 0" % S_WAVE)
e("s_cbranch_scc1 L_tail_a")
t_own(1)
lab("L_tail_a")
poll_words("tail", sWS, "s%d" % S_FLG, "s61", 1)
for x_ in stamp_ins(41): e(x_)
t_load(0)
e("s_cmp_lg_u32 s%d, 0" % S_WAVE)
e("s_cbranch_scc1 L_tail_b")
t_load(1)
e("s_waitcnt vmcnt(0) lgkmcnt(0)")
t_fin(0)
t_fin(1)
e("s_branch L_tail2")
lab("L_tail_b")
e("s_waitcnt vmcnt(0) lgkmcnt(0)")
t_fin(0)
lab("L_tail2")
if STAMP and os.environ.get('DBGST'):
    for x_ in stamp_ins(50): e(x_)
    e("s_cmp_lg_u32 s2, 5")
    e("s_cbranch_scc1 L_end")
    e("s_cmp_lg_u32 s%d, 0" % S_WAVE)
    e("s_cbranch_scc1 L_end")
    e("v_readlane_b32 s52, v111, 46")
    e("v_mov_b32 v1, 0")
    for (w, st) in ((1, 0), (2, 1), (3, 2), (5, 3), (6, 6), (7, 8), (9, 41), (10, 50)):
        e("v_readlane_b32 s53, v111, %d" % st)
        e("s_nop 3")
        e("s_sub_u32 s53, s53, s52")
        e("v_mov_b32 v2, s53")
        e("s_mov_b64 exec, 1")
        e("buffer_store_dword v2, v1, %s, 0 offen offset:%d" % (sDBG, w * 4))
        e("s_mov_b64 exec, -1")
elif STAMP:
    for x_ in stamp_ins(50): e(x_)
    e("s_lshl_b32 s52, s2, 3")
    e("s_add_u32 s52, s52, s%d" % S_WAVE)
    e("s_lshl_b32 s52, s52, 9")
    e("s_add_u32 s52, s52, %d" % STOFF)
    e("v_lshlrev_b32 v1, 2, v0")
    e("buffer_store_dword v111, v1, %s, s52 offen" % sWS)
    e("buffer_store_dword v110, v1, %s, s52 offen offset:256" % sWS)
lab("L_end")
e("s_endpgm")
out.append('.section .rodata,"a"')
out.append(".p2align 6")
out.append(".amdhsa_kernel %s" % KNAME)
out.append("  .amdhsa_next_free_vgpr 256")
out.append("  .amdhsa_next_free_sgpr 100")
out.append("  .amdhsa_accum_offset 256")
out.append("  .amdhsa_group_segment_fixed_size 0")
out.append("  .amdhsa_kernarg_size 48")
out.append("  .amdhsa_user_sgpr_count 2")
out.append("  .amdhsa_user_sgpr_kernarg_segment_ptr 1")
out.append("  .amdhsa_system_sgpr_workgroup_id_x 1")
out.append(".end_amdhsa_kernel")
ic, il, it = out.index("@@COMPUTE@@"), out.index("@@LOADER@@"), out.index("@@TAIL@@")
out = out[:ic] + out[il + 1:it] + out[ic + 1:il] + out[it + 1:]
print("\n".join(out))
```

```python
import sys

MODE = sys.argv[1] if len(sys.argv) > 1 else 'full'
KNAME = "standalone__dense_activation_silu__prompt_kernel"
STAMP = len(sys.argv) > 2 and sys.argv[2] == 'stamp'
STOFF = 128 * 1024 * 1024
import os
ROTM = int(os.environ.get('ROTM', '1'))
STARTM = int(os.environ.get('STARTM', '1'))
TOUCH = int(os.environ.get('TOUCH', '0'))
POLLT = int(os.environ.get('POLLT', '1'))
PF1 = int(os.environ.get('PF1', '0'))
FORCESLOW = int(os.environ.get('FORCESLOW', '0'))
HSC1 = 1
PBF16 = int(os.environ.get('PBF16', '1'))
CODEPF = int(os.environ.get('CODEPF', '1'))
PREADV = int(os.environ.get('PREADV', '1'))
NOHST = int(os.environ.get('NOHST', '0'))
NOA = int(os.environ.get('NOA', '0'))
PFW2 = int(os.environ.get('PFW2', '99'))
def stamp_ins(i):
    if not STAMP: return []
    r = ["s_memrealtime s[98:99]", "s_waitcnt lgkmcnt(0)", "v_writelane_b32 v111, s98, %d" % i]
    r += ["s_memtime s[98:99]", "s_waitcnt lgkmcnt(0)", "v_writelane_b32 v110, s98, %d" % i]
    return r

P1_SLOT = 53248
P1_X = 0
P1_W = 16384
P2_B = 0
P2_BS = 9216
P2_A = 82944
P2_AS = 8192
LDS_BYTES = 163840
HBLK = 73728
PART = 32 * 1024 * 1024
PQ = 18432
X_BYTES, W_BYTES, OUT_BYTES, WS_BYTES = 2359296, 5308416, 2359296, 268435456
R3_X = 0
R3_O = 82944 + 18432
SPIN_MAX = 400000
FLAGOFF = 64 * 1024 * 1024

out = []
def e(s): out.append("  " + s)
def lab(s): out.append(s + ":")

sX, sW1, sW2, sOUT, sDBG, sWS = "s[16:19]", "s[20:23]", "s[24:27]", "s[28:31]", "s[32:35]", "s[36:39]"
S_MT, S_KQ, S_NQ, S_WAVE, S_ROT1, S_ROT2, S_FS = 40, 41, 42, 43, 44, 45, 46
S_FLG = 96

V_LANE = 0
V_TRE, V_TRO, V_TR8, V_X0, V_X1 = 2, 3, 4, 5, 6
V_HLO, V_HHI, V_T2 = 7, 8, 9
V_L16 = 10
WB = 16
XB = 52
TMP = 84
ACC = 112
def acc(t, mi): return ACC + (t * 4 + mi) * 4
def wb(t): return WB + t * 4
def xb(par, mi): return XB + (par * 4 + mi) * 4
def vr(b, n): return "v[%d:%d]" % (b, b + n - 1)

out.append("; @launch grid=(256,1,1) block=(512,1,1) lds=%d" % LDS_BYTES)
out.append('.amdgcn_target "amdgcn-amd-amdhsa--gfx950"')
out.append(".text")
out.append(".globl %s" % KNAME)
out.append(".p2align 8")
out.append(".type %s,@function" % KNAME)
lab(KNAME)
e("s_cmp_ge_u32 s2, 256")
e("s_cbranch_scc1 L_end")
e("s_load_dwordx4 s[4:7], s[0:1], 0")
e("s_load_dwordx4 s[8:11], s[0:1], 16")
e("s_load_dwordx4 s[12:15], s[0:1], 32")
e("v_lshrrev_b32 v1, 6, v0")
e("v_and_b32 v0, 63, v0")
if STAMP:
    e("s_memrealtime s[98:99]")
    e("s_waitcnt lgkmcnt(0)")
    e("v_writelane_b32 v111, s98, 46")
e("s_and_b32 s47, s2, 7")
e("v_readfirstlane_b32 s%d, v1" % S_WAVE)
if CODEPF:
    e("s_getpc_b64 s[52:53]")
    lab("L_pc")
    e("s_cmp_ge_u32 s%d, 4" % S_WAVE)
    e("s_cbranch_scc1 L_nocpf")
    e("s_sub_u32 s52, s52, L_pc-%s" % KNAME)
    e("s_subb_u32 s53, s53, 0")
    e("s_lshl_b32 s54, s%d, 13" % S_WAVE)
    e("v_lshlrev_b32 v16, 7, v0")
    e("v_add_u32 v16, s54, v16")
    e("v_min_u32 v16, L_end-%s, v16" % KNAME)
    e("global_load_dword v100, v16, s[52:53]")
    lab("L_nocpf")
e("s_lshr_b32 s48, s2, 3")
e("s_lshr_b32 s%d, s47, 1" % S_KQ)
e("s_and_b32 s49, s47, 1")
e("s_lshl_b32 s49, s49, 3")
e("s_and_b32 s%d, s48, 7" % S_ROT2)
e("s_add_u32 s%d, s49, s%d" % (S_MT, S_ROT2))
e("s_lshr_b32 s%d, s48, 3" % S_NQ)
e("s_lshl_b32 s%d, s%d, 2" % (S_FS, S_KQ))
e("s_add_u32 s%d, s%d, s%d" % (S_FS, S_FS, S_NQ))
if ROTM == 1:
    e("s_add_u32 s%d, s%d, s%d" % (S_ROT1, S_NQ, S_ROT2))
    e("s_mul_i32 s47, s%d, 0x5556" % S_ROT1)
    e("s_lshr_b32 s47, s47, 16")
    e("s_mul_i32 s47, s47, 3")
    e("s_sub_u32 s%d, s%d, s47" % (S_ROT1, S_ROT1))
    e("s_mul_i32 s%d, s%d, 3" % (S_ROT1, S_ROT1))
elif ROTM == 0:
    e("s_mov_b32 s%d, 0" % S_ROT1)
elif ROTM == 2:
    e("s_add_u32 s%d, s%d, s%d" % (S_ROT1, S_NQ, S_ROT2))
    e("s_and_b32 s%d, s%d, 1" % (S_ROT1, S_ROT1))
    e("s_lshl_b32 s%d, s%d, 2" % (S_ROT1, S_ROT1))
e("s_lshl_b32 s47, s%d, 2" % S_MT)
e("s_add_u32 s47, s47, s%d" % S_KQ)
e("s_lshl_b32 s47, s47, 2")
e("s_add_u32 s47, s47, s%d" % S_NQ)
e("s_lshl_b32 s47, s47, 7")
e("s_add_u32 s%d, s47, %d" % (S_FLG, FLAGOFF))
e("v_lshlrev_b32 v%d, 4, v0" % V_L16)
for (base, p, n) in ((16, 4, X_BYTES), (20, 6, W_BYTES), (24, 8, W_BYTES), (28, 10, OUT_BYTES), (32, 12, 256), (36, 14, WS_BYTES)):
    e("s_mov_b32 s%d, %d" % (base + 2, n))
    e("s_mov_b32 s%d, 0x20000" % (base + 3))
S_LW = 50
VXE, VXO, VW1, VW2 = 2, 3, 32, 41
e("s_sub_u32 s%d, s%d, 4" % (S_LW, S_WAVE))
e("v_lshrrev_b32 v23, 3, v0")
e("v_and_b32 v24, 7, v0")
e("v_lshrrev_b32 v25, 4, v0")
e("v_xor_b32 v26, v24, v25")
e("v_xor_b32 v27, 4, v26")
e("v_mul_u32_u24 v23, 1152, v23")
e("v_lshl_add_u32 v%d, v26, 4, v23" % VXE)
e("v_lshl_add_u32 v%d, v27, 4, v23" % VXO)
e("s_mov_b32 s52, 0x71c71c8")
e("s_mov_b32 s53, 0xe38e38f")
e("s_mov_b32 s54, 9216")
for q in range(9):
    e("v_add_u32 v23, %d, v0" % (q * 64))
    e("v_mul_hi_u32 v24, v23, s52")
    e("v_mul_u32_u24 v25, 36, v24")
    e("v_sub_u32 v25, v23, v25")
    e("v_lshrrev_b32 v26, 2, v24")
    e("v_and_b32 v26, 2, v26")
    e("v_xor_b32 v25, v25, v26")
    e("v_mul_lo_u32 v24, v24, s54")
    e("v_lshl_add_u32 v%d, v25, 4, v24" % (VW1 + q))
S_XB, S_WB_, S_KX, S_KW, S_LX, S_LWW = 55, 56, 57, 58, 59, 60
e("s_mul_i32 s%d, s%d, 147456" % (S_XB, S_MT))
e("s_mul_i32 s52, s%d, %d" % (S_LW, 32 * 1152))
e("s_add_u32 s%d, s%d, s52" % (S_XB, S_XB))
e("s_mul_i32 s%d, s%d, 576" % (S_WB_, S_FS))
e("s_mul_i32 s52, s%d, %d" % (S_LW, 16 * 9216))
e("s_add_u32 s%d, s%d, s52" % (S_WB_, S_WB_))
e("s_lshl_b32 s%d, s%d, 7" % (S_KX, S_ROT1))
e("s_mul_i32 s%d, s%d, %d" % (S_KW, S_ROT1, 64 * 9216))
e("s_lshl_b32 s%d, s%d, 12" % (S_LX, S_LW))
e("s_mul_i32 s%d, s%d, 9216" % (S_LWW, S_LW))

e("s_waitcnt lgkmcnt(0)")
for (base, p, n) in ((16, 4, X_BYTES), (20, 6, W_BYTES), (24, 8, W_BYTES), (28, 10, OUT_BYTES), (32, 12, 256), (36, 14, WS_BYTES)):
    e("s_mov_b32 s%d, s%d" % (base, p))
    e("s_and_b32 s%d, s%d, 0xffff" % (base + 1, p + 1))
for x_ in stamp_ins(0): e(x_)
e("s_cmp_ge_u32 s%d, 4" % S_WAVE)
e("s_cbranch_scc0 L_compute")
out.append("@@COMPUTE@@")
lab("L_compute")

S_MH, S_FH = 50, 51
e("s_lshr_b32 s%d, s%d, 1" % (S_MH, S_WAVE))
e("s_and_b32 s%d, s%d, 1" % (S_FH, S_WAVE))
e("v_lshrrev_b32 v11, 4, v0")
e("v_bfe_u32 v12, v0, 2, 2")
e("v_and_b32 v13, 3, v0")
e("v_and_b32 v14, 1, v11")
e("v_and_b32 v15, 15, v0")
e("v_lshl_add_u32 v16, v11, 3, v12")
e("v_mul_u32_u24 v16, 576, v16")
e("v_lshl_add_u32 v16, v13, 3, v16")
e("v_lshlrev_b32 v17, 5, v14")
e("s_mul_i32 s52, s%d, 320" % S_FH)
e("s_add_u32 s52, s52, %d" % P1_W)
e("v_add_u32 v18, s52, v16")
e("v_add_u32 v%d, v18, v17" % V_TRE)
e("v_sub_u32 v%d, v18, v17" % V_TRO)
e("s_lshl_b32 s52, s%d, 5" % S_FH)
e("s_add_u32 s52, s52, %d" % (P1_W + 256))
e("s_lshl_b32 s53, s%d, 1" % S_FH)
e("s_sub_u32 s53, 1, s53")
e("v_mul_lo_u32 v18, v17, s53")
e("v_add3_u32 v%d, v16, v18, s52" % V_TR8)
e("v_lshrrev_b32 v17, 1, v15")
e("v_xor_b32 v18, v11, v17")
e("v_xor_b32 v19, 4, v18")
e("s_lshl_b32 s52, s%d, 13" % S_MH)
e("s_add_u32 s52, s52, %d" % P1_X)
e("v_lshlrev_b32 v20, 7, v15")
e("v_add_u32 v20, s52, v20")
e("v_lshl_add_u32 v%d, v18, 4, v20" % V_X0)
e("v_lshl_add_u32 v%d, v19, 4, v20" % V_X1)
e("v_lshl_add_u32 v16, v11, 2, v12")
e("v_mul_u32_u24 v16, 288, v16")
e("v_lshl_add_u32 v16, v13, 3, v16")
e("s_mul_i32 s52, s%d, %d" % (S_FH, P2_BS))
e("s_add_u32 s52, s52, %d" % P2_B)
e("v_add_u32 v%d, s52, v16" % V_T2)
e("s_lshl_b32 s52, s%d, 12" % S_MH)
e("s_mul_i32 s53, s%d, %d" % (S_FH, P2_AS))
e("s_add_u32 s52, s52, s53")
e("s_add_u32 s52, s52, %d" % P2_A)
e("s_lshl_b32 s53, s%d, 11" % S_FH)
e("s_add_u32 s54, s52, s53")
e("v_add_u32 v%d, s54, v%d" % (V_HLO, V_L16))
e("s_sub_u32 s54, s52, s53")
e("s_add_u32 s54, s54, 2048")
e("v_add_u32 v%d, s54, v%d" % (V_HHI, V_L16))
e("s_cmp_lg_u32 s%d, 0" % S_WAVE)
e("s_cbranch_scc1 L_noinit")
e("v_lshlrev_b32 v16, 2, v0")
e("v_mov_b32 v17, 0")
e("v_mov_b32 v18, 1")
e("s_mov_b64 exec, 0xffff")
e("buffer_store_dword v17, v16, %s, s%d offen sc1" % (sWS, S_FLG))
e("s_waitcnt vmcnt(0)")
e("s_mov_b64 exec, 1")
e("s_lshl_b32 s52, s%d, 4" % S_MT)
e("buffer_atomic_add v18, v17, %s, s52 offen sc1" % sDBG)
e("s_mov_b64 exec, -1")
lab("L_noinit")
for i in range(144):
    e("v_mov_b32 v%d, 0" % (ACC + i))

if PF1:
    e("v_and_b32 v16, 31, v0")
    e("v_mul_u32_u24 v16, 1152, v16")
    e("v_lshrrev_b32 v17, 5, v0")
    e("v_lshl_add_u32 v16, v17, 7, v16")
    e("s_mul_i32 s52, s%d, 147456" % S_MT)
    e("s_mul_i32 s53, s%d, %d" % (S_NQ, 32 * 1152))
    e("s_add_u32 s52, s52, s53")
    e("s_lshl_b32 s53, s%d, 8" % S_WAVE)
    e("s_add_u32 s53, s53, 256")
    e("s_min_u32 s53, s53, 896")
    e("s_add_u32 s52, s52, s53")
    e("buffer_load_dword v100, v16, %s, s52 offen" % sX)
    e("s_mov_b32 s52, 0x2aaaaaab")
    e("v_mul_hi_u32 v16, v0, s52")
    e("v_mul_u32_u24 v17, 6, v16")
    e("v_sub_u32 v17, v0, v17")
    e("v_lshlrev_b32 v17, 7, v17")
    e("v_min_u32 v17, 572, v17")
    e("v_min_u32 v16, 7, v16")
    e("s_mov_b32 s52, 9216")
    e("v_mul_lo_u32 v16, v16, s52")
    e("v_add_u32 v16, v16, v17")
    e("s_mul_i32 s52, s%d, 576" % S_FS)
    e("s_mul_i32 s53, s%d, %d" % (S_ROT2, 8 * 9216))
    e("s_add_u32 s52, s52, s53")
    e("s_add_u32 s53, s%d, 2" % S_WAVE)
    e("s_mul_i32 s53, s53, %d" % (64 * 9216))
    e("s_add_u32 s53, s52, s53")
    e("buffer_load_dword v101, v16, %s, s53 offen" % sW1)
    e("s_add_u32 s53, s%d, 6" % S_WAVE)
    e("s_min_u32 s53, s53, 8")
    e("s_mul_i32 s53, s53, %d" % (64 * 9216))
    e("s_add_u32 s53, s52, s53")
    e("buffer_load_dword v102, v16, %s, s53 offen" % sW1)

class Seq:
    def __init__(self): self.items = []
    def i(self, t): self.items.append(('i', t))
    def lds(self, t, tag): self.items.append(('lds', t, tag))
    def wait(self, tags, key): self.items.append(('wait', tags, key))
    def drain(self, t): self.items.append(('drain', t))

def w_reads_p1(t, ks, step):
    base = V_TR8 if t == 8 else (V_TRE if t % 2 == 0 else V_TRO)
    toff = 0 if t == 8 else t * 32
    r = []
    for h in range(2):
        r.append(("ds_read_b64_tr_b16 %s, v%d offset:%d" % (vr(wb(t) + 2 * h, 2), base, ks * 18432 + h * 2304 + toff), ('W', step, t)))
    return r
def x_reads_p1(ks, step):
    base = V_X0 if ks == 0 else V_X1
    return [("ds_read_b128 %s, v%d offset:%d" % (vr(xb(step & 1, mi), 4), base, mi * 2048), ('X', step)) for mi in range(4)]
def w_reads_p2(t, step):
    return [("ds_read_b64_tr_b16 %s, v%d offset:%d" % (vr(wb(t) + 2 * h, 2), V_T2, h * 4608 + t * 32), ('W', step, t)) for h in range(2)]
def x_reads_p2(step):
    r = []
    for mi in range(4):
        base = V_HLO if mi < 2 else V_HHI
        r.append(("ds_read_b128 %s, v%d offset:%d" % (vr(xb(step & 1, mi), 4), base, (mi & 1) * 1024), ('X', step)))
    return r

BAR_T = 2

def kstep(sq, keyp, step, carry, wnext, xnext, barrier=None, czero=False):
    pre = []
    if barrier is not None and PREADV:
        ib = barrier.index("s_barrier")
        extra = [b for b in barrier[ib + 1:] if b.startswith("s_memrealtime") or b.startswith("s_memtime") or b.startswith("v_writelane") or b.startswith("s_waitcnt")]
        pre = [b for b in barrier[ib + 1:] if b not in extra]
        barrier = barrier[:ib + 1] + extra
    q = list(carry)
    held = []
    blocked = barrier is not None
    if not blocked and xnext:
        pass
    for t in range(9):
        tags = [('W', step, t)] + ([('X', step)] if t == 0 else [])
        sq.wait(tags, (keyp, t))
        for mi in range(4):
            c = "0" if czero else vr(acc(t, mi), 4)
            sq.i("v_mfma_f32_16x16x32_bf16 %s, %s, %s, %s" % (vr(acc(t, mi), 4), vr(wb(t), 4), vr(xb(step & 1, mi), 4), c))
            if q and not (t == 8 and mi == 3):
                txt, tag = q.pop(0)
                sq.lds(txt, tag)
            elif pre:
                sq.i(pre.pop(0))
                while pre and pre[0].startswith("s_"): sq.i(pre.pop(0))
        new = wnext(t) if wnext else []
        if blocked:
            held += new
        else:
            q += new
        if t == (3 if barrier is None else BAR_T) and xnext and barrier is None:
            q += xnext
        if barrier is not None and t == BAR_T:
            assert not q, "carry not drained before barrier"
            assert not pre
            sq.drain("s_waitcnt lgkmcnt(0)")
            for b in barrier: sq.i(b)
            blocked = False
            q += (xnext or []) + held
            held = []
    return q

def resolve(seqs):
    issued = []
    res = {}
    for sq in seqs:
        for it in sq.items:
            if it[0] == 'lds':
                issued.append(it[2])
            elif it[0] == 'drain':
                issued = []
            elif it[0] == 'wait':
                tags = it[1]
                last = -1
                for idx, tg in enumerate(issued):
                    if tg in tags: last = idx
                n = 15 if last < 0 else min(15, len(issued) - 1 - last)
                res[it[2]] = min(res.get(it[2], 15), n)
    return res

def emit(sq, res):
    for it in sq.items:
        if it[0] in ('i', 'drain'): e(it[1])
        elif it[0] == 'lds': e(it[1])
        else: e("s_waitcnt lgkmcnt(%d)" % res[it[2]])

NBAR = {'c': 0}
def cbar(): NBAR['c'] += 1

S_SLOT, S_DELTA, S_CNT = 55, 56, 57
adv1 = ["s_barrier",
        "s_add_u32 s%d, s%d, 1" % (S_SLOT, S_SLOT),
        "s_cmp_eq_u32 s%d, 3" % S_SLOT,
        "s_cselect_b32 s%d, s71, s70" % S_DELTA,
        "s_cselect_b32 s%d, 0, s%d" % (S_SLOT, S_SLOT)] + \
       ["v_add_u32 v%d, s%d, v%d" % (r, S_DELTA, r) for r in (V_TRE, V_TRO, V_TR8, V_X0, V_X1)]

def p1_stage(j, keyp, carry, last):
    sq = Seq()
    s0, s1 = 2 * j, 2 * j + 1
    c = kstep(sq, (keyp, 0), s0, carry, lambda t: w_reads_p1(t, 1, s1), x_reads_p1(1, s1))
    if not last:
        c = kstep(sq, (keyp, 1), s1, c, lambda t: w_reads_p1(t, 0, s1 + 1), x_reads_p1(0, s1 + 1), barrier=adv1)
    else:
        c = kstep(sq, (keyp, 1), s1, c, None, None, barrier=["s_barrier"])
    return sq, c

pro = Seq()
pro.i("s_mov_b32 s%d, 0" % S_SLOT)
pro.i("s_mov_b32 s%d, 8" % S_CNT)
pro.i("s_mov_b32 s70, %d" % P1_SLOT)
pro.i("s_mov_b32 s71, %d" % ((-2 * P1_SLOT) & 0xffffffff))
pro.i("s_mov_b32 s72, %d" % (2 * P2_AS))
pro.i("s_mov_b32 s73, %d" % ((-7 * P2_AS) & 0xffffffff))
pro.i("s_mov_b32 s74, %d" % (2 * P2_BS))
pro.i("s_mov_b32 s75, %d" % ((-7 * P2_BS) & 0xffffffff))
for x_ in stamp_ins(45): pro.i(x_)
pro.i("s_barrier")
for x_ in stamp_ins(1): pro.i(x_)
for (txt, tag) in x_reads_p1(0, 0): pro.lds(txt, tag)
for t in range(8):
    for (txt, tag) in w_reads_p1(t, 0, 0): pro.lds(txt, tag)
carry0 = w_reads_p1(8, 0, 0)
seqs = [pro]
c = carry0
for j in range(8):
    sq, c = p1_stage(j, 'P1L', c, False)
    assert [x[0] for x in c] == [x[0] for x in carry0], (c, carry0)
    seqs.append(sq)
sq_last, c = p1_stage(8, 'P1T', c, True)
assert not c
seqs.append(sq_last)
res = resolve(seqs)
emit(pro, res)
lab("L_p1_loop")
emit(seqs[1], res)
e("s_sub_u32 s%d, s%d, 1" % (S_CNT, S_CNT))
e("s_cmp_lg_u32 s%d, 0" % S_CNT)
e("s_cbranch_scc1 L_p1_loop")
emit(sq_last, res)
NBAR['c'] += 1 + 8 + 1
for x_ in stamp_ins(2): e(x_)

S_SO = 60
S_GB = 65
for p in range(5):
    if p < 4:
        e("s_mul_i32 s52, s%d, 5" % S_FH)
        e("s_add_u32 s52, s52, %d" % (p + 9))
    else:
        e("s_mov_b32 s52, %d" % (4 + 9))
    e("s_sub_u32 s52, s52, s%d" % S_ROT2)
    e("s_cmp_ge_u32 s52, 9")
    e("s_cselect_b32 s53, 9, 0")
    e("s_sub_u32 s52, s52, s53")
    e("s_lshl_b32 s52, s52, 13")
    e("s_lshl_b32 s53, s%d, 12" % S_MH)
    e("s_add_u32 s%d, s52, s53" % (S_SO + p))
e("s_lshl_b32 s52, s%d, 3" % S_FH)
e("s_add_u32 s%d, s%d, s52" % (S_SO + 4, S_SO + 4))
e("s_lshl_b32 s52, s%d, 4" % S_MT)
e("s_add_u32 s52, s52, s%d" % S_FS)
e("s_mul_i32 s%d, s52, %d" % (S_GB, HBLK))
e("s_mov_b32 s66, 0xbfb8aa3b")
e("s_mov_b32 s67, 0xbfb8aa3b")
e("s_mov_b32 s68, 1.0")
e("s_mov_b32 s69, 1.0")

def silu_group(regs, T, P):
    n = len(regs)
    for k, a in enumerate(regs):
        for hh in range(2):
            e("v_pk_mul_f32 %s, %s, s[66:67]" % (vr(T + 4 * k + 2 * hh, 2), vr(a + 2 * hh, 2)))
    for k in range(4 * n):
        e("v_exp_f32 v%d, v%d" % (T + k, T + k))
    for k in range(2 * n):
        e("v_pk_add_f32 %s, %s, s[68:69]" % (vr(T + 2 * k, 2), vr(T + 2 * k, 2)))
    for k in range(4 * n):
        e("v_rcp_f32 v%d, v%d" % (T + k, T + k))
    for k, a in enumerate(regs):
        for hh in range(2):
            e("v_pk_mul_f32 %s, %s, %s" % (vr(T + 4 * k + 2 * hh, 2), vr(a + 2 * hh, 2), vr(T + 4 * k + 2 * hh, 2)))
    for k in range(2 * n):
        e("v_cvt_pk_bf16_f32 v%d, v%d, v%d" % (P + k, T + 2 * k, T + 2 * k + 1))

grp = 0
for p in range(5):
    e("s_add_u32 s53, s%d, %d" % (S_SO + p, P2_A))
    e("v_add_u32 v1, s53, v%d" % V_L16)
    e("s_add_u32 s52, s%d, s%d" % (S_GB, S_SO + p))
    for mi in range(4):
        T = 16 + (grp % 3) * 8
        P = 48 + (grp % 4) * 4
        grp += 1
        if p < 4:
            silu_group([acc(2 * p, mi), acc(2 * p + 1, mi)], T, P)
            e("ds_write_b128 v1, %s offset:%d" % (vr(P, 4), mi * 1024))
            if not NOHST: e("buffer_store_dwordx4 %s, v%d, %s, s52 offen offset:%d%s" % (vr(P, 4), V_L16, sWS, mi * 1024, " sc1" if HSC1 else ""))
        else:
            silu_group([acc(8, mi)], T, P)
            e("ds_write_b64 v1, %s offset:%d" % (vr(P, 2), mi * 1024))
            e("buffer_store_dwordx2 %s, v%d, %s, s52 offen offset:%d%s" % (vr(P, 2), V_L16, sWS, mi * 1024, " sc1" if HSC1 else ""))

if MODE == 'p1':
    e("s_waitcnt vmcnt(0) lgkmcnt(0)")
    e("s_branch L_end")
else:
    S_DA, S_DB = 58, 59
    def adv2(first):
        l = []
        if first: l.append("s_waitcnt vmcnt(0)")
        if first: l += stamp_ins(5)
        l += ["s_barrier"] + (stamp_ins(6) if first else []) + [
              "s_add_u32 s%d, s%d, 2" % (S_SLOT, S_SLOT),
              "s_cmp_ge_u32 s%d, 9" % S_SLOT,
              "s_cselect_b32 s%d, s73, s72" % S_DA,
              "s_cselect_b32 s%d, s75, s74" % S_DB,
              "s_cselect_b32 s52, 9, 0",
              "s_sub_u32 s%d, s%d, s52" % (S_SLOT, S_SLOT),
              "v_add_u32 v%d, s%d, v%d" % (V_T2, S_DB, V_T2),
              "v_add_u32 v%d, s%d, v%d" % (V_HLO, S_DA, V_HLO),
              "v_add_u32 v%d, s%d, v%d" % (V_HHI, S_DA, V_HHI)]
        return l
    def p2_stage(t, keyp, carry):
        sq = Seq()
        if t < 17:
            c = kstep(sq, keyp, t, carry, lambda tt: w_reads_p2(tt, t + 1), x_reads_p2(t + 1), barrier=adv2(t == 0), czero=(t == 0))
        else:
            step = t
            def mf(tt, mi):
                sq.i("v_mfma_f32_16x16x32_bf16 %s, %s, %s, %s" % (vr(acc(tt, mi), 4), vr(wb(tt), 4), vr(xb(step & 1, mi), 4), vr(acc(tt, mi), 4)))
            q = list(carry)
            for tt in range(9):
                sq.wait([('W', step, tt)] + ([('X', step)] if tt == 0 else []), (keyp, tt))
                for mi in (2, 3):
                    mf(tt, mi)
                    if q:
                        txt, tag = q.pop(0); sq.lds(txt, tag)
            wr = ["ds_write_b128 v1, %s offset:%d" % (vr(acc(tt, 2 + m), 4), (tt * 2 + m) * 1024) for tt in range(9) for m in range(2)]
            rd = ["ds_read_b128 %s, v2 offset:%d" % (vr(acc(tt, 2 + m), 4), (tt * 2 + m) * 1024) for tt in range(9) for m in range(2)]
            k = 0
            for tt in range(9):
                for mi in (0, 1):
                    mf(tt, mi)
                    if k < 9:
                        sq.lds(wr[2 * k], ('WR',)); sq.lds(wr[2 * k + 1], ('WR',))
                    else:
                        sq.lds(rd[2 * (k - 9)], ('RD',)); sq.lds(rd[2 * (k - 9) + 1], ('RD',))
                    k += 1
                    if k == 9:
                        sq.drain("s_waitcnt lgkmcnt(0)")
                        sq.i("s_barrier")
            c = []
        return sq, c
    pro = Seq()
    pro.i("s_mov_b32 s%d, s%d" % (S_SLOT, S_FH))
    pro.i("s_mov_b32 s%d, 8" % S_CNT)
    pro.drain("s_waitcnt lgkmcnt(0)")
    for x_ in stamp_ins(3): pro.i(x_)
    pro.i("s_barrier")
    for x_ in stamp_ins(4): pro.i(x_)
    for (txt, tag) in x_reads_p2(0): pro.lds(txt, tag)
    for t in range(8):
        for (txt, tag) in w_reads_p2(t, 0): pro.lds(txt, tag)
    carry0 = w_reads_p2(8, 0)
    seqs = [pro]
    c = carry0
    for t in range(18):
        keyp = 'P2F' if t == 0 else ('P2T' if t == 17 else ('P2L', t & 1))
        sq, c = p2_stage(t, keyp, c)
        if t < 17: assert [x[0] for x in c] == [x[0] for x in carry0]
        seqs.append(sq)
    assert not c
    res = resolve(seqs)
    emit(pro, res)
    emit(seqs[1], res)
    lab("L_p2_loop")
    emit(seqs[2], res)
    emit(seqs[3], res)
    e("s_sub_u32 s%d, s%d, 1" % (S_CNT, S_CNT))
    e("s_cmp_lg_u32 s%d, 0" % S_CNT)
    e("s_cbranch_scc1 L_p2_loop")
    e("s_mul_i32 s52, s%d, %d" % (S_WAVE, PQ))
    e("s_cmp_eq_u32 s%d, 3" % S_WAVE)
    e("s_cselect_b32 s53, %d, 0" % (P2_A - 3 * PQ))
    e("s_add_u32 s52, s52, s53")
    e("v_add_u32 v1, s52, v%d" % V_L16)
    e("s_xor_b32 s54, s%d, 1" % S_WAVE)
    e("s_mul_i32 s52, s54, %d" % PQ)
    e("s_cmp_eq_u32 s54, 3")
    e("s_cselect_b32 s53, %d, 0" % (P2_A - 3 * PQ))
    e("s_add_u32 s52, s52, s53")
    e("v_add_u32 v2, s52, v%d" % V_L16)
    e("v_add_u32 v3, %d, v%d" % (R3_O, V_L16))
    emit(seqs[18], res)
    NBAR['c'] += 1 + 17 + 1
    for x_ in stamp_ins(8): e(x_)
    for t in range(9):
        for m in range(2):
            f = t * 2 + m
            e("s_waitcnt lgkmcnt(%d)" % min(15, 17 - f))
            if t == 8 and m == 0: e("s_nop 7")
            for k in range(2):
                e("v_pk_add_f32 %s, %s, %s" % (vr(acc(t, m) + 2 * k, 2), vr(acc(t, m) + 2 * k, 2), vr(acc(t, 2 + m) + 2 * k, 2)))
    e("s_cmp_eq_u32 s%d, s%d" % (S_WAVE, S_KQ))
    e("s_cbranch_scc1 L_p3_own")
    e("s_lshl_b32 s52, s%d, 2" % S_MT)
    e("s_add_u32 s52, s52, s%d" % S_NQ)
    e("s_lshl_b32 s52, s52, 2")
    e("s_add_u32 s52, s52, s%d" % S_WAVE)
    e("s_lshl_b32 s52, s52, 2")
    e("s_add_u32 s52, s52, s%d" % S_KQ)
    e("s_mul_i32 s52, s52, %d" % PQ)
    e("s_add_u32 s52, s52, %d" % PART)
    for t in range(9):
        for m in range(2):
            f = t * 2 + m
            if not PBF16:
                if f % 4 == 0 and f: e("s_add_u32 s52, s52, 4096")
                e("buffer_store_dwordx4 %s, v%d, %s, s52 offen offset:%d sc1" % (vr(acc(t, m), 4), V_L16, sWS, (f % 4) * 1024))
            else:
                d = acc(t, 2) + 2 * m
                e("v_cvt_pk_bf16_f32 v%d, v%d, v%d" % (d, acc(t, m), acc(t, m) + 1))
                e("v_cvt_pk_bf16_f32 v%d, v%d, v%d" % (d + 1, acc(t, m) + 2, acc(t, m) + 3))
                if m == 1:
                    if t % 4 == 0 and t: e("s_add_u32 s52, s52, 4096")
                    e("buffer_store_dwordx4 %s, v%d, %s, s52 offen offset:%d sc1" % (vr(acc(t, 2), 4), V_L16, sWS, (t % 4) * 1024))
    e("s_lshl_b32 s52, s%d, 2" % S_MT)
    e("s_add_u32 s52, s52, s%d" % S_WAVE)
    e("s_lshl_b32 s52, s52, 2")
    e("s_add_u32 s52, s52, s%d" % S_NQ)
    e("s_lshl_b32 s52, s52, 7")
    e("s_lshl_b32 s53, s%d, 2" % S_KQ)
    e("s_add_u32 s52, s52, s53")
    e("s_add_u32 s52, s52, %d" % (FLAGOFF + 16))
    e("v_mov_b32 v1, 0")
    e("v_mov_b32 v2, 1")
    e("s_barrier")
    e("s_waitcnt vmcnt(0)")
    for x_ in stamp_ins(9): e(x_)
    e("s_mov_b64 exec, 1")
    e("buffer_store_dword v2, v1, %s, s52 offen sc1" % sWS)
    e("s_mov_b64 exec, -1")
    e("s_branch L_tail")
    lab("L_p3_own")
    for t in range(9):
        for m in range(2):
            e("ds_write_b128 v3, %s offset:%d" % (vr(acc(t, m), 4), (t * 2 + m) * 1024))
    e("s_waitcnt lgkmcnt(0)")
    e("s_barrier")
    NBAR['c'] += 1
    e("s_branch L_tail")

out.append("@@LOADER@@")
lab("L_loader")
class VM:
    def __init__(self): self.ops = []
    def issue(self, need): self.ops.append(need)
    def before_barrier(self, b):
        last = -1
        for i, n in enumerate(self.ops):
            if n <= b: last = i
        if last >= 0:
            n = len(self.ops) - 1 - last
            e("s_waitcnt vmcnt(%d)" % min(n, 63))
            self.ops = self.ops[last + 1:]
    def copy(self):
        v = VM(); v.ops = list(self.ops); return v

vm = VM()
def p1_issue(j):
    slot = (j % 3) * P1_SLOT
    e("s_add_u32 s61, s%d, s%d" % (S_XB, S_KX))
    e("s_add_u32 s62, s%d, s%d" % (S_WB_, S_KW))
    for i4 in range(4):
        e("s_add_u32 m0, s%d, %d" % (S_LX, slot + P1_X + i4 * 1024))
        e("s_add_u32 s63, s61, %d" % (i4 * 9216))
        e("buffer_load_dwordx4 v%d, %s, s63 offen lds" % (VXE if i4 % 2 == 0 else VXO, sX))
        vm.issue(j)
    for q in range(9):
        e("s_add_u32 m0, s%d, %d" % (S_LWW, slot + P1_W + q * 1024))
        e("s_nop 0")
        e("buffer_load_dwordx4 v%d, %s, s62 offen lds" % (VW1 + q, sW1))
        vm.issue(j)
    e("s_add_u32 s%d, s%d, 128" % (S_KX, S_KX))
    e("s_add_u32 s%d, s%d, %d" % (S_KW, S_KW, 64 * 9216))
    e("s_cmp_eq_u32 s%d, 1152" % S_KX)
    e("s_cselect_b32 s%d, 0, s%d" % (S_KX, S_KX))
    e("s_cselect_b32 s%d, 0, s%d" % (S_KW, S_KW))

NBAR['l'] = 0
def lbar(b, v):
    v.before_barrier(b)
    if b == 0:
        for x_ in stamp_ins(43): e(x_)
    if 11 <= b <= 22:
        for x_ in stamp_ins(b + 40): e(x_)
    e("s_barrier")
    for x_ in stamp_ins(1 + b): e(x_)

for x_ in stamp_ins(44): e(x_)
p1_issue(0)
if STARTM == 0: p1_issue(1)
for x_ in stamp_ins(42): e(x_)
for q in range(9):
    e("v_add_u32 v23, %d, v0" % (q * 64))
    e("v_mul_hi_u32 v24, v23, s53")
    e("v_mul_u32_u24 v25, 18, v24")
    e("v_sub_u32 v25, v23, v25")
    e("v_mul_u32_u24 v24, 1152, v24")
    e("v_lshl_add_u32 v%d, v25, 4, v24" % (VW2 + q))
S_SIS = 70
S_SLB = 80
S_HB = 84
for o in range(9):
    e("s_add_u32 s52, s%d, %d" % (S_ROT2, o))
    e("s_cmp_ge_u32 s52, 9")
    e("s_cselect_b32 s53, 9, 0")
    e("s_sub_u32 s52, s52, s53")
    e("s_mul_i32 s%d, s52, %d" % (S_SIS + o, 32 * 1152))
for si in range(4):
    e("s_add_u32 s52, s%d, %d" % (S_NQ, si))
    e("s_and_b32 s52, s52, 3")
    e("s_lshl_b32 s53, s%d, 2" % S_KQ)
    e("s_add_u32 s52, s52, s53")
    e("s_mul_i32 s53, s52, %d" % (288 * 1152))
    e("s_mul_i32 s54, s%d, 288" % S_NQ)
    e("s_add_u32 s%d, s53, s54" % (S_SLB + si))
    if si:
        e("s_lshl_b32 s53, s%d, 4" % S_MT)
        e("s_add_u32 s53, s53, s52")
        e("s_mul_i32 s%d, s53, %d" % (S_HB + si - 1, HBLK))
if STARTM == 1:
    e("s_waitcnt vmcnt(6)")
    p1_issue(1)
lbar(0, vm)
p1_issue(2)
for j in range(1, 7):
    lbar(j, vm)
    p1_issue(j + 2)
    if j == PFW2:
        e("s_lshl_b32 s61, s%d, 2" % S_ROT2)
        e("s_add_u32 s61, s61, s%d" % S_NQ)
        e("s_mul_i32 s61, s61, 41472")
        e("s_mul_i32 s62, s%d, 1327104" % S_KQ)
        e("s_add_u32 s61, s61, s62")
        e("s_mul_i32 s62, s%d, %d" % (S_LW, 81 * 128))
        e("s_add_u32 s61, s61, s62")
        e("v_lshlrev_b32 v28, 7, v0")
        e("v_min_u32 v29, 16, v0")
        e("v_lshlrev_b32 v29, 7, v29")
        e("buffer_load_dword v30, v28, %s, s61 offen" % sW2)
        vm.issue(1000)
        e("s_add_u32 s61, s61, 8192")
        e("buffer_load_dword v31, v29, %s, s61 offen" % sW2)
        vm.issue(1000)
lbar(7, vm)
for lw in range(1, 4):
    e("s_cmp_eq_u32 s%d, %d" % (S_LW, lw))
    e("s_cbranch_scc1 L_ld%d" % lw)

def need_of_step(s): return 10 + s // 2

def step_src(s):
    if s < 9: return 0, s
    i = s - 9
    return 1 + i % 3, i // 3
def issue_B(s, v):
    si, o = step_src(s)
    e("s_add_u32 s61, s%d, s%d" % (S_SLB + si, S_SIS + o))
    for q in range(9):
        e("s_mov_b32 m0, %d" % (P2_B + (s % 9) * P2_BS + q * 1024))
        e("s_nop 0")
        e("buffer_load_dwordx4 v%d, %s, s61 offen lds" % (VW2 + q, sW2))
        v.issue(need_of_step(s))
def issue_A(s, v):
    if NOA: return
    si, o = step_src(s)
    for half in range(2):
        e("s_mov_b32 m0, %d" % (P2_A + (s % 9) * P2_AS + half * 4096))
        e("s_add_u32 s61, s%d, %d" % (S_HB + si - 1, o * P2_AS + half * 4096))
        for q in range(4):
            e("buffer_load_dwordx4 v%d, %s, s61 offen offset:%d lds" % (V_L16, sWS, q * 1024))
            v.issue(need_of_step(s))

def poll_words(tag, srd, soff, lanes_mask_sreg_or_imm, thresh):
    e("s_mov_b32 s63, %d" % SPIN_MAX)
    lab("L_poll_%s" % tag)
    e("buffer_load_dword v24, v25, %s, %s offen sc1" % (srd, soff))
    e("s_waitcnt vmcnt(0)")
    e("v_cmp_le_u32 vcc, %d, v24" % thresh)
    e("s_sub_u32 s63, s63, 1")
    e("s_cmp_eq_u32 s63, 0")
    e("s_cbranch_scc1 L_polld_%s" % tag)
    e("s_and_b32 s64, vcc_lo, %s" % lanes_mask_sreg_or_imm)
    e("s_cmp_eq_u32 s64, %s" % lanes_mask_sreg_or_imm)
    e("s_cbranch_scc1 L_polld_%s" % tag)
    e("s_sleep 1")
    e("s_branch L_poll_%s" % tag)
    lab("L_polld_%s" % tag)

for lw in range(4):
    if lw: lab("L_ld%d" % lw)
    v = vm.copy()
    nb = 8
    for s in range(0, 5):
        if s % 4 == lw: issue_B(s, v)
    lbar(8, v); nb += 1
    for s in range(5, 9):
        if s % 4 == lw: issue_B(s, v)
    lbar(9, v); nb += 1
    if MODE == 'p1':
        e("s_waitcnt vmcnt(0)")
        e("s_branch L_end")
        NBAR['l'] = nb
        continue
    if lw == 0:
        e("v_and_b32 v25, 15, v0")
        e("v_lshlrev_b32 v25, 2, v25")
        e("s_lshl_b32 s62, s%d, 4" % S_MT)
        poll_words("init", sDBG, "s62", "1", 16)
        v.ops = []
        e("v_lshlrev_b32 v26, 7, v0")
        e("s_andn2_b32 s65, s%d, 0x180" % S_FLG)
        e("s_lshl_b32 s62, s%d, 2" % S_NQ)
        e("s_add_u32 s65, s65, s62")
        e("v_mov_b32 v27, 1")
    if lw in (1, 3):
        e("v_and_b32 v25, 15, v0")
        e("v_lshlrev_b32 v25, 2, v25")
    lbar(10, v); nb += 1
    polled = set()
    pend = []
    for t in range(17):
        lbar(11 + t, v); nb += 1
        if t == 0 and lw == 0:
            e("s_mov_b64 exec, 0xf")
            e("buffer_store_dword v27, v26, %s, s65 offen sc1" % sWS)
            e("s_mov_b64 exec, -1")
            v.issue(1000)
        for s_ in (2 * t + 9, 2 * t + 10):
            if s_ > 35: continue
            if lw == (0 if s_ % 2 == 0 else 2): issue_B(s_, v)
            if lw == (1 if s_ % 2 == 0 else 3):
                pend.append(s_)
        if lw in (1, 3) and t >= POLLT:
            if not polled:
                polled.add(1)
                e("s_lshl_b32 s61, 1, s%d" % S_NQ)
                e("s_xor_b32 s61, s61, 0xf")
                poll_words("a%d" % lw, sWS, "s%d" % S_FLG, "s61", 1)
                for x_ in stamp_ins(40): e(x_)
                v.ops = []
            for s_ in pend: issue_A(s_, v)
            pend = []
    lbar(28, v); nb += 1
    lbar(29, v); nb += 1
    NBAR['l'] = nb
    e("s_branch L_tail")

assert NBAR['c'] == NBAR['l'], NBAR

out.append("@@TAIL@@")
lab("L_tail")
TS = 1024 if PBF16 else 2048
e("v_and_b32 v25, 15, v0")
e("v_lshlrev_b32 v25, 2, v25")
e("s_lshl_b32 s52, s%d, 2" % S_MT)
e("s_add_u32 s52, s52, s%d" % S_NQ)
e("s_lshl_b32 s52, s52, 2")
e("s_add_u32 s52, s52, s%d" % S_KQ)
e("s_mul_i32 s52, s52, %d" % (4 * PQ))
e("s_add_u32 s52, s52, %d" % PART)
e("s_mul_i32 s53, s%d, %d" % (S_WAVE, TS))
e("s_add_u32 s52, s52, s53")
for k in range(3):
    e("s_add_u32 s54, s%d, %d" % (S_KQ, k + 1))
    e("s_and_b32 s54, s54, 3")
    e("s_mul_i32 s54, s54, %d" % PQ)
    e("s_add_u32 s%d, s52, s54" % (56 + k))
e("s_lshl_b32 s53, s%d, 11" % S_WAVE)
e("s_add_u32 s54, s53, %d" % R3_O)
e("v_add_u32 v1, s54, v%d" % V_L16)
e("v_and_b32 v2, 15, v0")
e("v_mul_u32_u24 v2, 1152, v2")
e("v_lshrrev_b32 v3, 4, v0")
e("v_lshl_add_u32 v2, v3, 3, v2")
e("s_lshl_b32 s54, s%d, 2" % S_MT)
e("s_add_u32 s54, s54, s%d" % S_KQ)
e("s_mul_i32 s54, s54, %d" % (32 * 1152))
e("s_mul_i32 s55, s%d, 288" % S_NQ)
e("s_add_u32 s59, s54, s55")
e("s_lshl_b32 s55, s%d, 5" % S_WAVE)
e("s_add_u32 s59, s59, s55")
e("s_lshl_b32 s61, 16, s%d" % S_KQ)
e("s_xor_b32 s61, s61, 0xf0")
def t_own(i):
    for m in range(2): e("ds_read_b128 %s, v1 offset:%d" % (vr(32 + i * 32 + 4 * m, 4), i * 16384 + m * 1024))
def t_load(i):
    b = 32 + i * 32 + 8
    for k in range(3):
        if i: e("s_add_u32 s%d, s%d, %d" % (56 + k, 56 + k, 8 * TS))
        if PBF16:
            e("buffer_load_dwordx4 %s, v%d, %s, s%d offen sc1" % (vr(b + 8 * k, 4), V_L16, sWS, 56 + k))
        else:
            for m in range(2):
                e("buffer_load_dwordx4 %s, v%d, %s, s%d offen offset:%d sc1" % (vr(b + 8 * k + 4 * m, 4), V_L16, sWS, 56 + k, m * 1024))
def t_fin(i):
    a = 32 + i * 32; b = a + 8
    for k in range(3):
        if PBF16:
            r = b + 8 * k
            for d in (3, 2, 1, 0):
                e("v_and_b32 v%d, 0xffff0000, v%d" % (r + 2 * d + 1, r + d))
                e("v_lshlrev_b32 v%d, 16, v%d" % (r + 2 * d, r + d))
        for hh in range(4):
            e("v_pk_add_f32 %s, %s, %s" % (vr(a + 2 * hh, 2), vr(a + 2 * hh, 2), vr(b + 8 * k + 2 * hh, 2)))
    for hh in range(4):
        e("v_cvt_pk_bf16_f32 v%d, v%d, v%d" % (b + hh, a + 2 * hh, a + 2 * hh + 1))
    if i: e("s_add_u32 s59, s59, 256")
    e("buffer_store_dwordx2 %s, v2, %s, s59 offen" % (vr(b, 2), sOUT))
    e("s_add_u32 s54, s59, %d" % (16 * 1152))
    e("buffer_store_dwordx2 %s, v2, %s, s54 offen" % (vr(b + 2, 2), sOUT))
t_own(0)
e("s_cmp_lg_u32 s%d, 0" % S_WAVE)
e("s_cbranch_scc1 L_tail_a")
t_own(1)
lab("L_tail_a")
poll_words("tail", sWS, "s%d" % S_FLG, "s61", 1)
for x_ in stamp_ins(41): e(x_)
t_load(0)
e("s_cmp_lg_u32 s%d, 0" % S_WAVE)
e("s_cbranch_scc1 L_tail_b")
t_load(1)
e("s_waitcnt vmcnt(0) lgkmcnt(0)")
t_fin(0)
t_fin(1)
e("s_branch L_tail2")
lab("L_tail_b")
e("s_waitcnt vmcnt(0) lgkmcnt(0)")
t_fin(0)
lab("L_tail2")
if STAMP and os.environ.get('DBGST'):
    for x_ in stamp_ins(50): e(x_)
    e("s_cmp_lg_u32 s2, 5")
    e("s_cbranch_scc1 L_end")
    e("s_cmp_lg_u32 s%d, 0" % S_WAVE)
    e("s_cbranch_scc1 L_end")
    e("v_readlane_b32 s52, v111, 46")
    e("v_mov_b32 v1, 0")
    for (w, st) in ((1, 0), (2, 1), (3, 2), (5, 3), (6, 6), (7, 8), (9, 41), (10, 50)):
        e("v_readlane_b32 s53, v111, %d" % st)
        e("s_nop 3")
        e("s_sub_u32 s53, s53, s52")
        e("v_mov_b32 v2, s53")
        e("s_mov_b64 exec, 1")
        e("buffer_store_dword v2, v1, %s, 0 offen offset:%d" % (sDBG, w * 4))
        e("s_mov_b64 exec, -1")
elif STAMP:
    for x_ in stamp_ins(50): e(x_)
    e("s_lshl_b32 s52, s2, 3")
    e("s_add_u32 s52, s52, s%d" % S_WAVE)
    e("s_lshl_b32 s52, s52, 9")
    e("s_add_u32 s52, s52, %d" % STOFF)
    e("v_lshlrev_b32 v1, 2, v0")
    e("buffer_store_dword v111, v1, %s, s52 offen" % sWS)
    e("buffer_store_dword v110, v1, %s, s52 offen offset:256" % sWS)
lab("L_end")
e("s_endpgm")
out.append('.section .rodata,"a"')
out.append(".p2align 6")
out.append(".amdhsa_kernel %s" % KNAME)
out.append("  .amdhsa_next_free_vgpr 256")
out.append("  .amdhsa_next_free_sgpr 100")
out.append("  .amdhsa_accum_offset 256")
out.append("  .amdhsa_group_segment_fixed_size 0")
out.append("  .amdhsa_kernarg_size 48")
out.append("  .amdhsa_user_sgpr_count 2")
out.append("  .amdhsa_user_sgpr_kernarg_segment_ptr 1")
out.append("  .amdhsa_system_sgpr_workgroup_id_x 1")
out.append(".end_amdhsa_kernel")
ic, il, it = out.index("@@COMPUTE@@"), out.index("@@LOADER@@"), out.index("@@TAIL@@")
out = out[:ic] + out[il + 1:it] + out[ic + 1:il] + out[it + 1:]
print("\n".join(out))
```

```python
import sys

MODE = sys.argv[1] if len(sys.argv) > 1 else 'full'
KNAME = "standalone__dense_activation_silu__prompt_kernel"
STAMP = len(sys.argv) > 2 and sys.argv[2] == 'stamp'
STOFF = 128 * 1024 * 1024
import os
ROTM = int(os.environ.get('ROTM', '1'))
STARTM = int(os.environ.get('STARTM', '1'))
TOUCH = int(os.environ.get('TOUCH', '0'))
POLLT = int(os.environ.get('POLLT', '1'))
PF1 = int(os.environ.get('PF1', '0'))
FORCESLOW = int(os.environ.get('FORCESLOW', '0'))
HSC1 = 1
PBF16 = int(os.environ.get('PBF16', '1'))
CODEPF = int(os.environ.get('CODEPF', '1'))
PREADV = int(os.environ.get('PREADV', '1'))
NOHST = int(os.environ.get('NOHST', '0'))
NOA = int(os.environ.get('NOA', '0'))
PFW2 = int(os.environ.get('PFW2', '0'))
def stamp_ins(i):
    if not STAMP: return []
    r = ["s_memrealtime s[98:99]", "s_waitcnt lgkmcnt(0)", "v_writelane_b32 v111, s98, %d" % i]
    r += ["s_memtime s[98:99]", "s_waitcnt lgkmcnt(0)", "v_writelane_b32 v110, s98, %d" % i]
    return r

P1_SLOT = 53248
P1_X = 0
P1_W = 16384
P2_B = 0
P2_BS = 9216
P2_A = 82944
P2_AS = 8192
LDS_BYTES = 163840
HBLK = 73728
PART = 32 * 1024 * 1024
PQ = 18432
X_BYTES, W_BYTES, OUT_BYTES, WS_BYTES = 2359296, 5308416, 2359296, 268435456
R3_X = 0
R3_O = 82944 + 18432
SPIN_MAX = 400000
FLAGOFF = 64 * 1024 * 1024

out = []
def e(s): out.append("  " + s)
def lab(s): out.append(s + ":")

sX, sW1, sW2, sOUT, sDBG, sWS = "s[16:19]", "s[20:23]", "s[24:27]", "s[28:31]", "s[32:35]", "s[36:39]"
S_MT, S_KQ, S_NQ, S_WAVE, S_ROT1, S_ROT2, S_FS = 40, 41, 42, 43, 44, 45, 46
S_FLG = 96

V_LANE = 0
V_TRE, V_TRO, V_TR8, V_X0, V_X1 = 2, 3, 4, 5, 6
V_HLO, V_HHI, V_T2 = 7, 8, 9
V_L16 = 10
WB = 16
XB = 52
TMP = 84
ACC = 112
def acc(t, mi): return ACC + (t * 4 + mi) * 4
def wb(t): return WB + t * 4
def xb(par, mi): return XB + (par * 4 + mi) * 4
def vr(b, n): return "v[%d:%d]" % (b, b + n - 1)

out.append("; @launch grid=(256,1,1) block=(512,1,1) lds=%d" % LDS_BYTES)
out.append('.amdgcn_target "amdgcn-amd-amdhsa--gfx950"')
out.append(".text")
out.append(".globl %s" % KNAME)
out.append(".p2align 8")
out.append(".type %s,@function" % KNAME)
lab(KNAME)
e("s_cmp_ge_u32 s2, 256")
e("s_cbranch_scc1 L_end")
e("s_load_dwordx4 s[4:7], s[0:1], 0")
e("s_load_dwordx4 s[8:11], s[0:1], 16")
e("s_load_dwordx4 s[12:15], s[0:1], 32")
e("v_lshrrev_b32 v1, 6, v0")
e("v_and_b32 v0, 63, v0")
if STAMP:
    e("s_memrealtime s[98:99]")
    e("s_waitcnt lgkmcnt(0)")
    e("v_writelane_b32 v111, s98, 46")
e("s_and_b32 s47, s2, 7")
e("v_readfirstlane_b32 s%d, v1" % S_WAVE)
if CODEPF:
    e("s_getpc_b64 s[52:53]")
    lab("L_pc")
    e("s_cmp_ge_u32 s%d, 4" % S_WAVE)
    e("s_cbranch_scc1 L_nocpf")
    e("s_sub_u32 s52, s52, L_pc-%s" % KNAME)
    e("s_subb_u32 s53, s53, 0")
    e("s_lshl_b32 s54, s%d, 13" % S_WAVE)
    e("v_lshlrev_b32 v16, 7, v0")
    e("v_add_u32 v16, s54, v16")
    e("v_min_u32 v16, L_end-%s, v16" % KNAME)
    e("global_load_dword v100, v16, s[52:53]")
    lab("L_nocpf")
e("s_lshr_b32 s48, s2, 3")
e("s_lshr_b32 s%d, s47, 1" % S_KQ)
e("s_and_b32 s49, s47, 1")
e("s_lshl_b32 s49, s49, 3")
e("s_and_b32 s%d, s48, 7" % S_ROT2)
e("s_add_u32 s%d, s49, s%d" % (S_MT, S_ROT2))
e("s_lshr_b32 s%d, s48, 3" % S_NQ)
e("s_lshl_b32 s%d, s%d, 2" % (S_FS, S_KQ))
e("s_add_u32 s%d, s%d, s%d" % (S_FS, S_FS, S_NQ))
if ROTM == 1:
    e("s_add_u32 s%d, s%d, s%d" % (S_ROT1, S_NQ, S_ROT2))
    e("s_mul_i32 s47, s%d, 0x5556" % S_ROT1)
    e("s_lshr_b32 s47, s47, 16")
    e("s_mul_i32 s47, s47, 3")
    e("s_sub_u32 s%d, s%d, s47" % (S_ROT1, S_ROT1))
    e("s_mul_i32 s%d, s%d, 3" % (S_ROT1, S_ROT1))
elif ROTM == 0:
    e("s_mov_b32 s%d, 0" % S_ROT1)
elif ROTM == 2:
    e("s_add_u32 s%d, s%d, s%d" % (S_ROT1, S_NQ, S_ROT2))
    e("s_and_b32 s%d, s%d, 1" % (S_ROT1, S_ROT1))
    e("s_lshl_b32 s%d, s%d, 2" % (S_ROT1, S_ROT1))
e("s_lshl_b32 s47, s%d, 2" % S_MT)
e("s_add_u32 s47, s47, s%d" % S_KQ)
e("s_lshl_b32 s47, s47, 2")
e("s_add_u32 s47, s47, s%d" % S_NQ)
e("s_lshl_b32 s47, s47, 7")
e("s_add_u32 s%d, s47, %d" % (S_FLG, FLAGOFF))
e("v_lshlrev_b32 v%d, 4, v0" % V_L16)
for (base, p, n) in ((16, 4, X_BYTES), (20, 6, W_BYTES), (24, 8, W_BYTES), (28, 10, OUT_BYTES), (32, 12, 256), (36, 14, WS_BYTES)):
    e("s_mov_b32 s%d, %d" % (base + 2, n))
    e("s_mov_b32 s%d, 0x20000" % (base + 3))
S_LW = 50
VXE, VXO, VW1, VW2 = 2, 3, 32, 41
e("s_sub_u32 s%d, s%d, 4" % (S_LW, S_WAVE))
e("v_lshrrev_b32 v23, 3, v0")
e("v_and_b32 v24, 7, v0")
e("v_lshrrev_b32 v25, 4, v0")
e("v_xor_b32 v26, v24, v25")
e("v_xor_b32 v27, 4, v26")
e("v_mul_u32_u24 v23, 1152, v23")
e("v_lshl_add_u32 v%d, v26, 4, v23" % VXE)
e("v_lshl_add_u32 v%d, v27, 4, v23" % VXO)
e("s_mov_b32 s52, 0x71c71c8")
e("s_mov_b32 s53, 0xe38e38f")
e("s_mov_b32 s54, 9216")
for q in range(9):
    e("v_add_u32 v23, %d, v0" % (q * 64))
    e("v_mul_hi_u32 v24, v23, s52")
    e("v_mul_u32_u24 v25, 36, v24")
    e("v_sub_u32 v25, v23, v25")
    e("v_lshrrev_b32 v26, 2, v24")
    e("v_and_b32 v26, 2, v26")
    e("v_xor_b32 v25, v25, v26")
    e("v_mul_lo_u32 v24, v24, s54")
    e("v_lshl_add_u32 v%d, v25, 4, v24" % (VW1 + q))
S_XB, S_WB_, S_KX, S_KW, S_LX, S_LWW = 55, 56, 57, 58, 59, 60
e("s_mul_i32 s%d, s%d, 147456" % (S_XB, S_MT))
e("s_mul_i32 s52, s%d, %d" % (S_LW, 32 * 1152))
e("s_add_u32 s%d, s%d, s52" % (S_XB, S_XB))
e("s_mul_i32 s%d, s%d, 576" % (S_WB_, S_FS))
e("s_mul_i32 s52, s%d, %d" % (S_LW, 16 * 9216))
e("s_add_u32 s%d, s%d, s52" % (S_WB_, S_WB_))
e("s_lshl_b32 s%d, s%d, 7" % (S_KX, S_ROT1))
e("s_mul_i32 s%d, s%d, %d" % (S_KW, S_ROT1, 64 * 9216))
e("s_lshl_b32 s%d, s%d, 12" % (S_LX, S_LW))
e("s_mul_i32 s%d, s%d, 9216" % (S_LWW, S_LW))

e("s_waitcnt lgkmcnt(0)")
for (base, p, n) in ((16, 4, X_BYTES), (20, 6, W_BYTES), (24, 8, W_BYTES), (28, 10, OUT_BYTES), (32, 12, 256), (36, 14, WS_BYTES)):
    e("s_mov_b32 s%d, s%d" % (base, p))
    e("s_and_b32 s%d, s%d, 0xffff" % (base + 1, p + 1))
for x_ in stamp_ins(0): e(x_)
e("s_cmp_ge_u32 s%d, 4" % S_WAVE)
e("s_cbranch_scc0 L_compute")
out.append("@@COMPUTE@@")
lab("L_compute")

S_MH, S_FH = 50, 51
e("s_lshr_b32 s%d, s%d, 1" % (S_MH, S_WAVE))
e("s_and_b32 s%d, s%d, 1" % (S_FH, S_WAVE))
e("v_lshrrev_b32 v11, 4, v0")
e("v_bfe_u32 v12, v0, 2, 2")
e("v_and_b32 v13, 3, v0")
e("v_and_b32 v14, 1, v11")
e("v_and_b32 v15, 15, v0")
e("v_lshl_add_u32 v16, v11, 3, v12")
e("v_mul_u32_u24 v16, 576, v16")
e("v_lshl_add_u32 v16, v13, 3, v16")
e("v_lshlrev_b32 v17, 5, v14")
e("s_mul_i32 s52, s%d, 320" % S_FH)
e("s_add_u32 s52, s52, %d" % P1_W)
e("v_add_u32 v18, s52, v16")
e("v_add_u32 v%d, v18, v17" % V_TRE)
e("v_sub_u32 v%d, v18, v17" % V_TRO)
e("s_lshl_b32 s52, s%d, 5" % S_FH)
e("s_add_u32 s52, s52, %d" % (P1_W + 256))
e("s_lshl_b32 s53, s%d, 1" % S_FH)
e("s_sub_u32 s53, 1, s53")
e("v_mul_lo_u32 v18, v17, s53")
e("v_add3_u32 v%d, v16, v18, s52" % V_TR8)
e("v_lshrrev_b32 v17, 1, v15")
e("v_xor_b32 v18, v11, v17")
e("v_xor_b32 v19, 4, v18")
e("s_lshl_b32 s52, s%d, 13" % S_MH)
e("s_add_u32 s52, s52, %d" % P1_X)
e("v_lshlrev_b32 v20, 7, v15")
e("v_add_u32 v20, s52, v20")
e("v_lshl_add_u32 v%d, v18, 4, v20" % V_X0)
e("v_lshl_add_u32 v%d, v19, 4, v20" % V_X1)
e("v_lshl_add_u32 v16, v11, 2, v12")
e("v_mul_u32_u24 v16, 288, v16")
e("v_lshl_add_u32 v16, v13, 3, v16")
e("s_mul_i32 s52, s%d, %d" % (S_FH, P2_BS))
e("s_add_u32 s52, s52, %d" % P2_B)
e("v_add_u32 v%d, s52, v16" % V_T2)
e("s_lshl_b32 s52, s%d, 12" % S_MH)
e("s_mul_i32 s53, s%d, %d" % (S_FH, P2_AS))
e("s_add_u32 s52, s52, s53")
e("s_add_u32 s52, s52, %d" % P2_A)
e("s_lshl_b32 s53, s%d, 11" % S_FH)
e("s_add_u32 s54, s52, s53")
e("v_add_u32 v%d, s54, v%d" % (V_HLO, V_L16))
e("s_sub_u32 s54, s52, s53")
e("s_add_u32 s54, s54, 2048")
e("v_add_u32 v%d, s54, v%d" % (V_HHI, V_L16))
e("s_cmp_lg_u32 s%d, 0" % S_WAVE)
e("s_cbranch_scc1 L_noinit")
e("v_lshlrev_b32 v16, 2, v0")
e("v_mov_b32 v17, 0")
e("v_mov_b32 v18, 1")
e("s_mov_b64 exec, 0xffff")
e("buffer_store_dword v17, v16, %s, s%d offen sc1" % (sWS, S_FLG))
e("s_waitcnt vmcnt(0)")
e("s_mov_b64 exec, 1")
e("s_lshl_b32 s52, s%d, 4" % S_MT)
e("buffer_atomic_add v18, v17, %s, s52 offen sc1" % sDBG)
e("s_mov_b64 exec, -1")
lab("L_noinit")
for i in range(144):
    e("v_mov_b32 v%d, 0" % (ACC + i))

if PF1:
    e("v_and_b32 v16, 31, v0")
    e("v_mul_u32_u24 v16, 1152, v16")
    e("v_lshrrev_b32 v17, 5, v0")
    e("v_lshl_add_u32 v16, v17, 7, v16")
    e("s_mul_i32 s52, s%d, 147456" % S_MT)
    e("s_mul_i32 s53, s%d, %d" % (S_NQ, 32 * 1152))
    e("s_add_u32 s52, s52, s53")
    e("s_lshl_b32 s53, s%d, 8" % S_WAVE)
    e("s_add_u32 s53, s53, 256")
    e("s_min_u32 s53, s53, 896")
    e("s_add_u32 s52, s52, s53")
    e("buffer_load_dword v100, v16, %s, s52 offen" % sX)
    e("s_mov_b32 s52, 0x2aaaaaab")
    e("v_mul_hi_u32 v16, v0, s52")
    e("v_mul_u32_u24 v17, 6, v16")
    e("v_sub_u32 v17, v0, v17")
    e("v_lshlrev_b32 v17, 7, v17")
    e("v_min_u32 v17, 572, v17")
    e("v_min_u32 v16, 7, v16")
    e("s_mov_b32 s52, 9216")
    e("v_mul_lo_u32 v16, v16, s52")
    e("v_add_u32 v16, v16, v17")
    e("s_mul_i32 s52, s%d, 576" % S_FS)
    e("s_mul_i32 s53, s%d, %d" % (S_ROT2, 8 * 9216))
    e("s_add_u32 s52, s52, s53")
    e("s_add_u32 s53, s%d, 2" % S_WAVE)
    e("s_mul_i32 s53, s53, %d" % (64 * 9216))
    e("s_add_u32 s53, s52, s53")
    e("buffer_load_dword v101, v16, %s, s53 offen" % sW1)
    e("s_add_u32 s53, s%d, 6" % S_WAVE)
    e("s_min_u32 s53, s53, 8")
    e("s_mul_i32 s53, s53, %d" % (64 * 9216))
    e("s_add_u32 s53, s52, s53")
    e("buffer_load_dword v102, v16, %s, s53 offen" % sW1)

class Seq:
    def __init__(self): self.items = []
    def i(self, t): self.items.append(('i', t))
    def lds(self, t, tag): self.items.append(('lds', t, tag))
    def wait(self, tags, key): self.items.append(('wait', tags, key))
    def drain(self, t): self.items.append(('drain', t))

def w_reads_p1(t, ks, step):
    base = V_TR8 if t == 8 else (V_TRE if t % 2 == 0 else V_TRO)
    toff = 0 if t == 8 else t * 32
    r = []
    for h in range(2):
        r.append(("ds_read_b64_tr_b16 %s, v%d offset:%d" % (vr(wb(t) + 2 * h, 2), base, ks * 18432 + h * 2304 + toff), ('W', step, t)))
    return r
def x_reads_p1(ks, step):
    base = V_X0 if ks == 0 else V_X1
    return [("ds_read_b128 %s, v%d offset:%d" % (vr(xb(step & 1, mi), 4), base, mi * 2048), ('X', step)) for mi in range(4)]
def w_reads_p2(t, step):
    return [("ds_read_b64_tr_b16 %s, v%d offset:%d" % (vr(wb(t) + 2 * h, 2), V_T2, h * 4608 + t * 32), ('W', step, t)) for h in range(2)]
def x_reads_p2(step):
    r = []
    for mi in range(4):
        base = V_HLO if mi < 2 else V_HHI
        r.append(("ds_read_b128 %s, v%d offset:%d" % (vr(xb(step & 1, mi), 4), base, (mi & 1) * 1024), ('X', step)))
    return r

BAR_T = 2

def kstep(sq, keyp, step, carry, wnext, xnext, barrier=None, czero=False):
    pre = []
    if barrier is not None and PREADV:
        ib = barrier.index("s_barrier")
        extra = [b for b in barrier[ib + 1:] if b.startswith("s_memrealtime") or b.startswith("s_memtime") or b.startswith("v_writelane") or b.startswith("s_waitcnt")]
        pre = [b for b in barrier[ib + 1:] if b not in extra]
        barrier = barrier[:ib + 1] + extra
    q = list(carry)
    held = []
    blocked = barrier is not None
    if not blocked and xnext:
        pass
    for t in range(9):
        tags = [('W', step, t)] + ([('X', step)] if t == 0 else [])
        sq.wait(tags, (keyp, t))
        for mi in range(4):
            c = "0" if czero else vr(acc(t, mi), 4)
            sq.i("v_mfma_f32_16x16x32_bf16 %s, %s, %s, %s" % (vr(acc(t, mi), 4), vr(wb(t), 4), vr(xb(step & 1, mi), 4), c))
            if q and not (t == 8 and mi == 3):
                txt, tag = q.pop(0)
                sq.lds(txt, tag)
            elif pre:
                sq.i(pre.pop(0))
                while pre and pre[0].startswith("s_"): sq.i(pre.pop(0))
        new = wnext(t) if wnext else []
        if blocked:
            held += new
        else:
            q += new
        if t == (3 if barrier is None else BAR_T) and xnext and barrier is None:
            q += xnext
        if barrier is not None and t == BAR_T:
            assert not q, "carry not drained before barrier"
            assert not pre
            sq.drain("s_waitcnt lgkmcnt(0)")
            for b in barrier: sq.i(b)
            blocked = False
            q += (xnext or []) + held
            held = []
    return q

def resolve(seqs):
    issued = []
    res = {}
    for sq in seqs:
        for it in sq.items:
            if it[0] == 'lds':
                issued.append(it[2])
            elif it[0] == 'drain':
                issued = []
            elif it[0] == 'wait':
                tags = it[1]
                last = -1
                for idx, tg in enumerate(issued):
                    if tg in tags: last = idx
                n = 15 if last < 0 else min(15, len(issued) - 1 - last)
                res[it[2]] = min(res.get(it[2], 15), n)
    return res

def emit(sq, res):
    for it in sq.items:
        if it[0] in ('i', 'drain'): e(it[1])
        elif it[0] == 'lds': e(it[1])
        else: e("s_waitcnt lgkmcnt(%d)" % res[it[2]])

NBAR = {'c': 0}
def cbar(): NBAR['c'] += 1

S_SLOT, S_DELTA, S_CNT = 55, 56, 57
adv1 = ["s_barrier",
        "s_add_u32 s%d, s%d, 1" % (S_SLOT, S_SLOT),
        "s_cmp_eq_u32 s%d, 3" % S_SLOT,
        "s_cselect_b32 s%d, s71, s70" % S_DELTA,
        "s_cselect_b32 s%d, 0, s%d" % (S_SLOT, S_SLOT)] + \
       ["v_add_u32 v%d, s%d, v%d" % (r, S_DELTA, r) for r in (V_TRE, V_TRO, V_TR8, V_X0, V_X1)]

def p1_stage(j, keyp, carry, last):
    sq = Seq()
    s0, s1 = 2 * j, 2 * j + 1
    c = kstep(sq, (keyp, 0), s0, carry, lambda t: w_reads_p1(t, 1, s1), x_reads_p1(1, s1))
    if not last:
        c = kstep(sq, (keyp, 1), s1, c, lambda t: w_reads_p1(t, 0, s1 + 1), x_reads_p1(0, s1 + 1), barrier=adv1)
    else:
        c = kstep(sq, (keyp, 1), s1, c, None, None, barrier=["s_barrier"])
    return sq, c

pro = Seq()
pro.i("s_mov_b32 s%d, 0" % S_SLOT)
pro.i("s_mov_b32 s%d, 8" % S_CNT)
pro.i("s_mov_b32 s70, %d" % P1_SLOT)
pro.i("s_mov_b32 s71, %d" % ((-2 * P1_SLOT) & 0xffffffff))
pro.i("s_mov_b32 s72, %d" % (2 * P2_AS))
pro.i("s_mov_b32 s73, %d" % ((-7 * P2_AS) & 0xffffffff))
pro.i("s_mov_b32 s74, %d" % (2 * P2_BS))
pro.i("s_mov_b32 s75, %d" % ((-7 * P2_BS) & 0xffffffff))
for x_ in stamp_ins(45): pro.i(x_)
pro.i("s_barrier")
for x_ in stamp_ins(1): pro.i(x_)
for (txt, tag) in x_reads_p1(0, 0): pro.lds(txt, tag)
for t in range(8):
    for (txt, tag) in w_reads_p1(t, 0, 0): pro.lds(txt, tag)
carry0 = w_reads_p1(8, 0, 0)
seqs = [pro]
c = carry0
for j in range(8):
    sq, c = p1_stage(j, 'P1L', c, False)
    assert [x[0] for x in c] == [x[0] for x in carry0], (c, carry0)
    seqs.append(sq)
sq_last, c = p1_stage(8, 'P1T', c, True)
assert not c
seqs.append(sq_last)
res = resolve(seqs)
emit(pro, res)
lab("L_p1_loop")
emit(seqs[1], res)
e("s_sub_u32 s%d, s%d, 1" % (S_CNT, S_CNT))
e("s_cmp_lg_u32 s%d, 0" % S_CNT)
e("s_cbranch_scc1 L_p1_loop")
emit(sq_last, res)
NBAR['c'] += 1 + 8 + 1
for x_ in stamp_ins(2): e(x_)

S_SO = 60
S_GB = 65
for p in range(5):
    if p < 4:
        e("s_mul_i32 s52, s%d, 5" % S_FH)
        e("s_add_u32 s52, s52, %d" % (p + 9))
    else:
        e("s_mov_b32 s52, %d" % (4 + 9))
    e("s_sub_u32 s52, s52, s%d" % S_ROT2)
    e("s_cmp_ge_u32 s52, 9")
    e("s_cselect_b32 s53, 9, 0")
    e("s_sub_u32 s52, s52, s53")
    e("s_lshl_b32 s52, s52, 13")
    e("s_lshl_b32 s53, s%d, 12" % S_MH)
    e("s_add_u32 s%d, s52, s53" % (S_SO + p))
e("s_lshl_b32 s52, s%d, 3" % S_FH)
e("s_add_u32 s%d, s%d, s52" % (S_SO + 4, S_SO + 4))
e("s_lshl_b32 s52, s%d, 4" % S_MT)
e("s_add_u32 s52, s52, s%d" % S_FS)
e("s_mul_i32 s%d, s52, %d" % (S_GB, HBLK))
e("s_mov_b32 s66, 0xbfb8aa3b")
e("s_mov_b32 s67, 0xbfb8aa3b")
e("s_mov_b32 s68, 1.0")
e("s_mov_b32 s69, 1.0")

def silu_group(regs, T, P):
    n = len(regs)
    for k, a in enumerate(regs):
        for hh in range(2):
            e("v_pk_mul_f32 %s, %s, s[66:67]" % (vr(T + 4 * k + 2 * hh, 2), vr(a + 2 * hh, 2)))
    for k in range(4 * n):
        e("v_exp_f32 v%d, v%d" % (T + k, T + k))
    for k in range(2 * n):
        e("v_pk_add_f32 %s, %s, s[68:69]" % (vr(T + 2 * k, 2), vr(T + 2 * k, 2)))
    for k in range(4 * n):
        e("v_rcp_f32 v%d, v%d" % (T + k, T + k))
    for k, a in enumerate(regs):
        for hh in range(2):
            e("v_pk_mul_f32 %s, %s, %s" % (vr(T + 4 * k + 2 * hh, 2), vr(a + 2 * hh, 2), vr(T + 4 * k + 2 * hh, 2)))
    for k in range(2 * n):
        e("v_cvt_pk_bf16_f32 v%d, v%d, v%d" % (P + k, T + 2 * k, T + 2 * k + 1))

grp = 0
for p in range(5):
    e("s_add_u32 s53, s%d, %d" % (S_SO + p, P2_A))
    e("v_add_u32 v1, s53, v%d" % V_L16)
    e("s_add_u32 s52, s%d, s%d" % (S_GB, S_SO + p))
    for mi in range(4):
        T = 16 + (grp % 3) * 8
        P = 48 + (grp % 4) * 4
        grp += 1
        if p < 4:
            silu_group([acc(2 * p, mi), acc(2 * p + 1, mi)], T, P)
            e("ds_write_b128 v1, %s offset:%d" % (vr(P, 4), mi * 1024))
            if not NOHST: e("buffer_store_dwordx4 %s, v%d, %s, s52 offen offset:%d%s" % (vr(P, 4), V_L16, sWS, mi * 1024, " sc1" if HSC1 else ""))
        else:
            silu_group([acc(8, mi)], T, P)
            e("ds_write_b64 v1, %s offset:%d" % (vr(P, 2), mi * 1024))
            e("buffer_store_dwordx2 %s, v%d, %s, s52 offen offset:%d%s" % (vr(P, 2), V_L16, sWS, mi * 1024, " sc1" if HSC1 else ""))

if MODE == 'p1':
    e("s_waitcnt vmcnt(0) lgkmcnt(0)")
    e("s_branch L_end")
else:
    S_DA, S_DB = 58, 59
    def adv2(first):
        l = []
        if first: l.append("s_waitcnt vmcnt(0)")
        if first: l += stamp_ins(5)
        l += ["s_barrier"] + (stamp_ins(6) if first else []) + [
              "s_add_u32 s%d, s%d, 2" % (S_SLOT, S_SLOT),
              "s_cmp_ge_u32 s%d, 9" % S_SLOT,
              "s_cselect_b32 s%d, s73, s72" % S_DA,
              "s_cselect_b32 s%d, s75, s74" % S_DB,
              "s_cselect_b32 s52, 9, 0",
              "s_sub_u32 s%d, s%d, s52" % (S_SLOT, S_SLOT),
              "v_add_u32 v%d, s%d, v%d" % (V_T2, S_DB, V_T2),
              "v_add_u32 v%d, s%d, v%d" % (V_HLO, S_DA, V_HLO),
              "v_add_u32 v%d, s%d, v%d" % (V_HHI, S_DA, V_HHI)]
        return l
    def p2_stage(t, keyp, carry):
        sq = Seq()
        if t < 17:
            c = kstep(sq, keyp, t, carry, lambda tt: w_reads_p2(tt, t + 1), x_reads_p2(t + 1), barrier=adv2(t == 0), czero=(t == 0))
        else:
            step = t
            def mf(tt, mi):
                sq.i("v_mfma_f32_16x16x32_bf16 %s, %s, %s, %s" % (vr(acc(tt, mi), 4), vr(wb(tt), 4), vr(xb(step & 1, mi), 4), vr(acc(tt, mi), 4)))
            q = list(carry)
            for tt in range(9):
                sq.wait([('W', step, tt)] + ([('X', step)] if tt == 0 else []), (keyp, tt))
                for mi in (2, 3):
                    mf(tt, mi)
                    if q:
                        txt, tag = q.pop(0); sq.lds(txt, tag)
            wr = ["ds_write_b128 v1, %s offset:%d" % (vr(acc(tt, 2 + m), 4), (tt * 2 + m) * 1024) for tt in range(9) for m in range(2)]
            rd = ["ds_read_b128 %s, v2 offset:%d" % (vr(acc(tt, 2 + m), 4), (tt * 2 + m) * 1024) for tt in range(9) for m in range(2)]
            k = 0
            for tt in range(9):
                for mi in (0, 1):
                    mf(tt, mi)
                    if k < 9:
                        sq.lds(wr[2 * k], ('WR',)); sq.lds(wr[2 * k + 1], ('WR',))
                    else:
                        sq.lds(rd[2 * (k - 9)], ('RD',)); sq.lds(rd[2 * (k - 9) + 1], ('RD',))
                    k += 1
                    if k == 9:
                        sq.drain("s_waitcnt lgkmcnt(0)")
                        sq.i("s_barrier")
            c = []
        return sq, c
    pro = Seq()
    pro.i("s_mov_b32 s%d, s%d" % (S_SLOT, S_FH))
    pro.i("s_mov_b32 s%d, 8" % S_CNT)
    pro.drain("s_waitcnt lgkmcnt(0)")
    for x_ in stamp_ins(3): pro.i(x_)
    pro.i("s_barrier")
    for x_ in stamp_ins(4): pro.i(x_)
    for (txt, tag) in x_reads_p2(0): pro.lds(txt, tag)
    for t in range(8):
        for (txt, tag) in w_reads_p2(t, 0): pro.lds(txt, tag)
    carry0 = w_reads_p2(8, 0)
    seqs = [pro]
    c = carry0
    for t in range(18):
        keyp = 'P2F' if t == 0 else ('P2T' if t == 17 else ('P2L', t & 1))
        sq, c = p2_stage(t, keyp, c)
        if t < 17: assert [x[0] for x in c] == [x[0] for x in carry0]
        seqs.append(sq)
    assert not c
    res = resolve(seqs)
    emit(pro, res)
    emit(seqs[1], res)
    lab("L_p2_loop")
    emit(seqs[2], res)
    emit(seqs[3], res)
    e("s_sub_u32 s%d, s%d, 1" % (S_CNT, S_CNT))
    e("s_cmp_lg_u32 s%d, 0" % S_CNT)
    e("s_cbranch_scc1 L_p2_loop")
    e("s_mul_i32 s52, s%d, %d" % (S_WAVE, PQ))
    e("s_cmp_eq_u32 s%d, 3" % S_WAVE)
    e("s_cselect_b32 s53, %d, 0" % (P2_A - 3 * PQ))
    e("s_add_u32 s52, s52, s53")
    e("v_add_u32 v1, s52, v%d" % V_L16)
    e("s_xor_b32 s54, s%d, 1" % S_WAVE)
    e("s_mul_i32 s52, s54, %d" % PQ)
    e("s_cmp_eq_u32 s54, 3")
    e("s_cselect_b32 s53, %d, 0" % (P2_A - 3 * PQ))
    e("s_add_u32 s52, s52, s53")
    e("v_add_u32 v2, s52, v%d" % V_L16)
    e("v_add_u32 v3, %d, v%d" % (R3_O, V_L16))
    emit(seqs[18], res)
    NBAR['c'] += 1 + 17 + 1
    for x_ in stamp_ins(8): e(x_)
    for t in range(9):
        for m in range(2):
            f = t * 2 + m
            e("s_waitcnt lgkmcnt(%d)" % min(15, 17 - f))
            if t == 8 and m == 0: e("s_nop 7")
            for k in range(2):
                e("v_pk_add_f32 %s, %s, %s" % (vr(acc(t, m) + 2 * k, 2), vr(acc(t, m) + 2 * k, 2), vr(acc(t, 2 + m) + 2 * k, 2)))
    e("s_cmp_eq_u32 s%d, s%d" % (S_WAVE, S_KQ))
    e("s_cbranch_scc1 L_p3_own")
    e("s_lshl_b32 s52, s%d, 2" % S_MT)
    e("s_add_u32 s52, s52, s%d" % S_NQ)
    e("s_lshl_b32 s52, s52, 2")
    e("s_add_u32 s52, s52, s%d" % S_WAVE)
    e("s_lshl_b32 s52, s52, 2")
    e("s_add_u32 s52, s52, s%d" % S_KQ)
    e("s_mul_i32 s52, s52, %d" % PQ)
    e("s_add_u32 s52, s52, %d" % PART)
    for t in range(9):
        for m in range(2):
            f = t * 2 + m
            if not PBF16:
                if f % 4 == 0 and f: e("s_add_u32 s52, s52, 4096")
                e("buffer_store_dwordx4 %s, v%d, %s, s52 offen offset:%d sc1" % (vr(acc(t, m), 4), V_L16, sWS, (f % 4) * 1024))
            else:
                d = acc(t, 2) + 2 * m
                e("v_cvt_pk_bf16_f32 v%d, v%d, v%d" % (d, acc(t, m), acc(t, m) + 1))
                e("v_cvt_pk_bf16_f32 v%d, v%d, v%d" % (d + 1, acc(t, m) + 2, acc(t, m) + 3))
                if m == 1:
                    if t % 4 == 0 and t: e("s_add_u32 s52, s52, 4096")
                    e("buffer_store_dwordx4 %s, v%d, %s, s52 offen offset:%d sc1" % (vr(acc(t, 2), 4), V_L16, sWS, (t % 4) * 1024))
    e("s_lshl_b32 s52, s%d, 2" % S_MT)
    e("s_add_u32 s52, s52, s%d" % S_WAVE)
    e("s_lshl_b32 s52, s52, 2")
    e("s_add_u32 s52, s52, s%d" % S_NQ)
    e("s_lshl_b32 s52, s52, 7")
    e("s_lshl_b32 s53, s%d, 2" % S_KQ)
    e("s_add_u32 s52, s52, s53")
    e("s_add_u32 s52, s52, %d" % (FLAGOFF + 16))
    e("v_mov_b32 v1, 0")
    e("v_mov_b32 v2, 1")
    e("s_barrier")
    e("s_waitcnt vmcnt(0)")
    for x_ in stamp_ins(9): e(x_)
    e("s_mov_b64 exec, 1")
    e("buffer_store_dword v2, v1, %s, s52 offen sc1" % sWS)
    e("s_mov_b64 exec, -1")
    e("s_branch L_tail")
    lab("L_p3_own")
    for t in range(9):
        for m in range(2):
            e("ds_write_b128 v3, %s offset:%d" % (vr(acc(t, m), 4), (t * 2 + m) * 1024))
    e("s_waitcnt lgkmcnt(0)")
    e("s_barrier")
    NBAR['c'] += 1
    e("s_branch L_tail")

out.append("@@LOADER@@")
lab("L_loader")
class VM:
    def __init__(self): self.ops = []
    def issue(self, need): self.ops.append(need)
    def before_barrier(self, b):
        last = -1
        for i, n in enumerate(self.ops):
            if n <= b: last = i
        if last >= 0:
            n = len(self.ops) - 1 - last
            e("s_waitcnt vmcnt(%d)" % min(n, 63))
            self.ops = self.ops[last + 1:]
    def copy(self):
        v = VM(); v.ops = list(self.ops); return v

vm = VM()
def p1_issue(j):
    slot = (j % 3) * P1_SLOT
    e("s_add_u32 s61, s%d, s%d" % (S_XB, S_KX))
    e("s_add_u32 s62, s%d, s%d" % (S_WB_, S_KW))
    for i4 in range(4):
        e("s_add_u32 m0, s%d, %d" % (S_LX, slot + P1_X + i4 * 1024))
        e("s_add_u32 s63, s61, %d" % (i4 * 9216))
        e("buffer_load_dwordx4 v%d, %s, s63 offen lds" % (VXE if i4 % 2 == 0 else VXO, sX))
        vm.issue(j)
    for q in range(9):
        e("s_add_u32 m0, s%d, %d" % (S_LWW, slot + P1_W + q * 1024))
        e("s_nop 0")
        e("buffer_load_dwordx4 v%d, %s, s62 offen lds" % (VW1 + q, sW1))
        vm.issue(j)
    e("s_add_u32 s%d, s%d, 128" % (S_KX, S_KX))
    e("s_add_u32 s%d, s%d, %d" % (S_KW, S_KW, 64 * 9216))
    e("s_cmp_eq_u32 s%d, 1152" % S_KX)
    e("s_cselect_b32 s%d, 0, s%d" % (S_KX, S_KX))
    e("s_cselect_b32 s%d, 0, s%d" % (S_KW, S_KW))

NBAR['l'] = 0
def lbar(b, v):
    v.before_barrier(b)
    if b == 0:
        for x_ in stamp_ins(43): e(x_)
    if 11 <= b <= 22:
        for x_ in stamp_ins(b + 40): e(x_)
    e("s_barrier")
    for x_ in stamp_ins(1 + b): e(x_)

for x_ in stamp_ins(44): e(x_)
p1_issue(0)
if STARTM == 0: p1_issue(1)
for x_ in stamp_ins(42): e(x_)
for q in range(9):
    e("v_add_u32 v23, %d, v0" % (q * 64))
    e("v_mul_hi_u32 v24, v23, s53")
    e("v_mul_u32_u24 v25, 18, v24")
    e("v_sub_u32 v25, v23, v25")
    e("v_mul_u32_u24 v24, 1152, v24")
    e("v_lshl_add_u32 v%d, v25, 4, v24" % (VW2 + q))
S_SIS = 70
S_SLB = 80
S_HB = 84
for o in range(9):
    e("s_add_u32 s52, s%d, %d" % (S_ROT2, o))
    e("s_cmp_ge_u32 s52, 9")
    e("s_cselect_b32 s53, 9, 0")
    e("s_sub_u32 s52, s52, s53")
    e("s_mul_i32 s%d, s52, %d" % (S_SIS + o, 32 * 1152))
for si in range(4):
    e("s_add_u32 s52, s%d, %d" % (S_NQ, si))
    e("s_and_b32 s52, s52, 3")
    e("s_lshl_b32 s53, s%d, 2" % S_KQ)
    e("s_add_u32 s52, s52, s53")
    e("s_mul_i32 s53, s52, %d" % (288 * 1152))
    e("s_mul_i32 s54, s%d, 288" % S_NQ)
    e("s_add_u32 s%d, s53, s54" % (S_SLB + si))
    if si:
        e("s_lshl_b32 s53, s%d, 4" % S_MT)
        e("s_add_u32 s53, s53, s52")
        e("s_mul_i32 s%d, s53, %d" % (S_HB + si - 1, HBLK))
if STARTM == 1:
    e("s_waitcnt vmcnt(6)")
    p1_issue(1)
lbar(0, vm)
p1_issue(2)
for j in range(1, 7):
    lbar(j, vm)
    p1_issue(j + 2)
    if PFW2 and 2 <= j <= 6:
        if j == 2:
            e("s_lshl_b32 s67, s%d, 2" % S_ROT2)
            e("s_add_u32 s67, s67, s%d" % S_NQ)
            e("s_mul_i32 s67, s67, 41472")
            e("s_mul_i32 s62, s%d, 1327104" % S_KQ)
            e("s_add_u32 s67, s67, s62")
            e("s_mul_i32 s62, s%d, 10368" % S_LW)
            e("s_add_u32 s67, s67, s62")
        for k in range(3 if j == 2 else 2):
            e("buffer_load_dwordx4 v[28:31], v%d, %s, s67 offen" % (V_L16, sW2))
            e("s_add_u32 s67, s67, 1024")
            vm.issue(1000)
lbar(7, vm)
for lw in range(1, 4):
    e("s_cmp_eq_u32 s%d, %d" % (S_LW, lw))
    e("s_cbranch_scc1 L_ld%d" % lw)

def need_of_step(s): return 10 + s // 2

def step_src(s):
    if s < 9: return 0, s
    i = s - 9
    return 1 + i % 3, i // 3
def issue_B(s, v):
    si, o = step_src(s)
    e("s_add_u32 s61, s%d, s%d" % (S_SLB + si, S_SIS + o))
    for q in range(9):
        e("s_mov_b32 m0, %d" % (P2_B + (s % 9) * P2_BS + q * 1024))
        e("s_nop 0")
        e("buffer_load_dwordx4 v%d, %s, s61 offen lds" % (VW2 + q, sW2))
        v.issue(need_of_step(s))
def issue_A(s, v):
    if NOA: return
    si, o = step_src(s)
    for half in range(2):
        e("s_mov_b32 m0, %d" % (P2_A + (s % 9) * P2_AS + half * 4096))
        e("s_add_u32 s61, s%d, %d" % (S_HB + si - 1, o * P2_AS + half * 4096))
        for q in range(4):
            e("buffer_load_dwordx4 v%d, %s, s61 offen offset:%d lds" % (V_L16, sWS, q * 1024))
            v.issue(need_of_step(s))

def poll_words(tag, srd, soff, lanes_mask_sreg_or_imm, thresh):
    e("s_mov_b32 s63, %d" % SPIN_MAX)
    lab("L_poll_%s" % tag)
    e("buffer_load_dword v24, v25, %s, %s offen sc1" % (srd, soff))
    e("s_waitcnt vmcnt(0)")
    e("v_cmp_le_u32 vcc, %d, v24" % thresh)
    e("s_sub_u32 s63, s63, 1")
    e("s_cmp_eq_u32 s63, 0")
    e("s_cbranch_scc1 L_polld_%s" % tag)
    e("s_and_b32 s64, vcc_lo, %s" % lanes_mask_sreg_or_imm)
    e("s_cmp_eq_u32 s64, %s" % lanes_mask_sreg_or_imm)
    e("s_cbranch_scc1 L_polld_%s" % tag)
    e("s_sleep 1")
    e("s_branch L_poll_%s" % tag)
    lab("L_polld_%s" % tag)

for lw in range(4):
    if lw: lab("L_ld%d" % lw)
    v = vm.copy()
    nb = 8
    for s in range(0, 5):
        if s % 4 == lw: issue_B(s, v)
    lbar(8, v); nb += 1
    for s in range(5, 9):
        if s % 4 == lw: issue_B(s, v)
    lbar(9, v); nb += 1
    if MODE == 'p1':
        e("s_waitcnt vmcnt(0)")
        e("s_branch L_end")
        NBAR['l'] = nb
        continue
    if lw == 0:
        e("v_and_b32 v25, 15, v0")
        e("v_lshlrev_b32 v25, 2, v25")
        e("s_lshl_b32 s62, s%d, 4" % S_MT)
        poll_words("init", sDBG, "s62", "1", 16)
        v.ops = []
        e("v_lshlrev_b32 v26, 7, v0")
        e("s_andn2_b32 s65, s%d, 0x180" % S_FLG)
        e("s_lshl_b32 s62, s%d, 2" % S_NQ)
        e("s_add_u32 s65, s65, s62")
        e("v_mov_b32 v27, 1")
    if lw in (1, 3):
        e("v_and_b32 v25, 15, v0")
        e("v_lshlrev_b32 v25, 2, v25")
    lbar(10, v); nb += 1
    polled = set()
    pend = []
    for t in range(17):
        lbar(11 + t, v); nb += 1
        if t == 0 and lw == 0:
            e("s_mov_b64 exec, 0xf")
            e("buffer_store_dword v27, v26, %s, s65 offen sc1" % sWS)
            e("s_mov_b64 exec, -1")
            v.issue(1000)
        for s_ in (2 * t + 9, 2 * t + 10):
            if s_ > 35: continue
            if lw == (0 if s_ % 2 == 0 else 2): issue_B(s_, v)
            if lw == (1 if s_ % 2 == 0 else 3):
                pend.append(s_)
        if lw in (1, 3) and t >= POLLT:
            if not polled:
                polled.add(1)
                e("s_lshl_b32 s61, 1, s%d" % S_NQ)
                e("s_xor_b32 s61, s61, 0xf")
                poll_words("a%d" % lw, sWS, "s%d" % S_FLG, "s61", 1)
                for x_ in stamp_ins(40): e(x_)
                v.ops = []
            for s_ in pend: issue_A(s_, v)
            pend = []
    lbar(28, v); nb += 1
    lbar(29, v); nb += 1
    NBAR['l'] = nb
    e("s_branch L_tail")

assert NBAR['c'] == NBAR['l'], NBAR

out.append("@@TAIL@@")
lab("L_tail")
TS = 1024 if PBF16 else 2048
e("v_and_b32 v25, 15, v0")
e("v_lshlrev_b32 v25, 2, v25")
e("s_lshl_b32 s52, s%d, 2" % S_MT)
e("s_add_u32 s52, s52, s%d" % S_NQ)
e("s_lshl_b32 s52, s52, 2")
e("s_add_u32 s52, s52, s%d" % S_KQ)
e("s_mul_i32 s52, s52, %d" % (4 * PQ))
e("s_add_u32 s52, s52, %d" % PART)
e("s_mul_i32 s53, s%d, %d" % (S_WAVE, TS))
e("s_add_u32 s52, s52, s53")
for k in range(3):
    e("s_add_u32 s54, s%d, %d" % (S_KQ, k + 1))
    e("s_and_b32 s54, s54, 3")
    e("s_mul_i32 s54, s54, %d" % PQ)
    e("s_add_u32 s%d, s52, s54" % (56 + k))
e("s_lshl_b32 s53, s%d, 11" % S_WAVE)
e("s_add_u32 s54, s53, %d" % R3_O)
e("v_add_u32 v1, s54, v%d" % V_L16)
e("v_and_b32 v2, 15, v0")
e("v_mul_u32_u24 v2, 1152, v2")
e("v_lshrrev_b32 v3, 4, v0")
e("v_lshl_add_u32 v2, v3, 3, v2")
e("s_lshl_b32 s54, s%d, 2" % S_MT)
e("s_add_u32 s54, s54, s%d" % S_KQ)
e("s_mul_i32 s54, s54, %d" % (32 * 1152))
e("s_mul_i32 s55, s%d, 288" % S_NQ)
e("s_add_u32 s59, s54, s55")
e("s_lshl_b32 s55, s%d, 5" % S_WAVE)
e("s_add_u32 s59, s59, s55")
e("s_lshl_b32 s61, 16, s%d" % S_KQ)
e("s_xor_b32 s61, s61, 0xf0")
def t_own(i):
    for m in range(2): e("ds_read_b128 %s, v1 offset:%d" % (vr(32 + i * 32 + 4 * m, 4), i * 16384 + m * 1024))
def t_load(i):
    b = 32 + i * 32 + 8
    for k in range(3):
        if i: e("s_add_u32 s%d, s%d, %d" % (56 + k, 56 + k, 8 * TS))
        if PBF16:
            e("buffer_load_dwordx4 %s, v%d, %s, s%d offen sc1" % (vr(b + 8 * k, 4), V_L16, sWS, 56 + k))
        else:
            for m in range(2):
                e("buffer_load_dwordx4 %s, v%d, %s, s%d offen offset:%d sc1" % (vr(b + 8 * k + 4 * m, 4), V_L16, sWS, 56 + k, m * 1024))
def t_fin(i):
    a = 32 + i * 32; b = a + 8
    for k in range(3):
        if PBF16:
            r = b + 8 * k
            for d in (3, 2, 1, 0):
                e("v_and_b32 v%d, 0xffff0000, v%d" % (r + 2 * d + 1, r + d))
                e("v_lshlrev_b32 v%d, 16, v%d" % (r + 2 * d, r + d))
        for hh in range(4):
            e("v_pk_add_f32 %s, %s, %s" % (vr(a + 2 * hh, 2), vr(a + 2 * hh, 2), vr(b + 8 * k + 2 * hh, 2)))
    for hh in range(4):
        e("v_cvt_pk_bf16_f32 v%d, v%d, v%d" % (b + hh, a + 2 * hh, a + 2 * hh + 1))
    if i: e("s_add_u32 s59, s59, 256")
    e("buffer_store_dwordx2 %s, v2, %s, s59 offen" % (vr(b, 2), sOUT))
    e("s_add_u32 s54, s59, %d" % (16 * 1152))
    e("buffer_store_dwordx2 %s, v2, %s, s54 offen" % (vr(b + 2, 2), sOUT))
t_own(0)
e("s_cmp_lg_u32 s%d, 0" % S_WAVE)
e("s_cbranch_scc1 L_tail_a")
t_own(1)
lab("L_tail_a")
poll_words("tail", sWS, "s%d" % S_FLG, "s61", 1)
for x_ in stamp_ins(41): e(x_)
t_load(0)
e("s_cmp_lg_u32 s%d, 0" % S_WAVE)
e("s_cbranch_scc1 L_tail_b")
t_load(1)
e("s_waitcnt vmcnt(0) lgkmcnt(0)")
t_fin(0)
t_fin(1)
e("s_branch L_tail2")
lab("L_tail_b")
e("s_waitcnt vmcnt(0) lgkmcnt(0)")
t_fin(0)
lab("L_tail2")
if STAMP and os.environ.get('DBGST'):
    for x_ in stamp_ins(50): e(x_)
    e("s_cmp_lg_u32 s2, 5")
    e("s_cbranch_scc1 L_end")
    e("s_cmp_lg_u32 s%d, 0" % S_WAVE)
    e("s_cbranch_scc1 L_end")
    e("v_readlane_b32 s52, v111, 46")
    e("v_mov_b32 v1, 0")
    for (w, st) in ((1, 0), (2, 1), (3, 2), (5, 3), (6, 6), (7, 8), (9, 41), (10, 50)):
        e("v_readlane_b32 s53, v111, %d" % st)
        e("s_nop 3")
        e("s_sub_u32 s53, s53, s52")
        e("v_mov_b32 v2, s53")
        e("s_mov_b64 exec, 1")
        e("buffer_store_dword v2, v1, %s, 0 offen offset:%d" % (sDBG, w * 4))
        e("s_mov_b64 exec, -1")
elif STAMP:
    for x_ in stamp_ins(50): e(x_)
    e("s_lshl_b32 s52, s2, 3")
    e("s_add_u32 s52, s52, s%d" % S_WAVE)
    e("s_lshl_b32 s52, s52, 9")
    e("s_add_u32 s52, s52, %d" % STOFF)
    e("v_lshlrev_b32 v1, 2, v0")
    e("buffer_store_dword v111, v1, %s, s52 offen" % sWS)
    e("buffer_store_dword v110, v1, %s, s52 offen offset:256" % sWS)
lab("L_end")
e("s_endpgm")
out.append('.section .rodata,"a"')
out.append(".p2align 6")
out.append(".amdhsa_kernel %s" % KNAME)
out.append("  .amdhsa_next_free_vgpr 256")
out.append("  .amdhsa_next_free_sgpr 100")
out.append("  .amdhsa_accum_offset 256")
out.append("  .amdhsa_group_segment_fixed_size 0")
out.append("  .amdhsa_kernarg_size 48")
out.append("  .amdhsa_user_sgpr_count 2")
out.append("  .amdhsa_user_sgpr_kernarg_segment_ptr 1")
out.append("  .amdhsa_system_sgpr_workgroup_id_x 1")
out.append(".end_amdhsa_kernel")
ic, il, it = out.index("@@COMPUTE@@"), out.index("@@LOADER@@"), out.index("@@TAIL@@")
out = out[:ic] + out[il + 1:it] + out[ic + 1:il] + out[it + 1:]
print("\n".join(out))
```

```python
import sys

MODE = sys.argv[1] if len(sys.argv) > 1 else 'full'
KNAME = "standalone__dense_activation_silu__prompt_kernel"
STAMP = len(sys.argv) > 2 and sys.argv[2] == 'stamp'
import os
WSOFF = int(os.environ.get('WSOFF', '0')) * 1024 * 1024
STOFF = 70 * 1024 * 1024
import os
ROTM = int(os.environ.get('ROTM', '1'))
STARTM = int(os.environ.get('STARTM', '1'))
TOUCH = int(os.environ.get('TOUCH', '0'))
POLLT = int(os.environ.get('POLLT', '1'))
PF1 = int(os.environ.get('PF1', '0'))
FORCESLOW = int(os.environ.get('FORCESLOW', '0'))
HSC1 = 1
PBF16 = int(os.environ.get('PBF16', '1'))
CODEPF = int(os.environ.get('CODEPF', '1'))
PREADV = int(os.environ.get('PREADV', '1'))
NOHST = int(os.environ.get('NOHST', '0'))
NOA = int(os.environ.get('NOA', '0'))
PFW2 = int(os.environ.get('PFW2', '0'))
def stamp_ins(i):
    if not STAMP: return []
    r = ["s_memrealtime s[98:99]", "s_waitcnt lgkmcnt(0)", "v_writelane_b32 v111, s98, %d" % i]
    r += ["s_memtime s[98:99]", "s_waitcnt lgkmcnt(0)", "v_writelane_b32 v110, s98, %d" % i]
    return r

P1_SLOT = 53248
P1_X = 0
P1_W = 16384
P2_B = 0
P2_BS = 9216
P2_A = 82944
P2_AS = 8192
LDS_BYTES = 163840
HBLK = 73728
PART = 32 * 1024 * 1024
PQ = 18432
X_BYTES, W_BYTES, OUT_BYTES, WS_BYTES = 2359296, 5308416, 2359296, 268435456 - WSOFF
R3_X = 0
R3_O = 82944 + 18432
SPIN_MAX = 400000
FLAGOFF = 64 * 1024 * 1024

out = []
def e(s): out.append("  " + s)
def lab(s): out.append(s + ":")

sX, sW1, sW2, sOUT, sDBG, sWS = "s[16:19]", "s[20:23]", "s[24:27]", "s[28:31]", "s[32:35]", "s[36:39]"
S_MT, S_KQ, S_NQ, S_WAVE, S_ROT1, S_ROT2, S_FS = 40, 41, 42, 43, 44, 45, 46
S_FLG = 96

V_LANE = 0
V_TRE, V_TRO, V_TR8, V_X0, V_X1 = 2, 3, 4, 5, 6
V_HLO, V_HHI, V_T2 = 7, 8, 9
V_L16 = 10
WB = 16
XB = 52
TMP = 84
ACC = 112
def acc(t, mi): return ACC + (t * 4 + mi) * 4
def wb(t): return WB + t * 4
def xb(par, mi): return XB + (par * 4 + mi) * 4
def vr(b, n): return "v[%d:%d]" % (b, b + n - 1)

out.append("; @launch grid=(256,1,1) block=(512,1,1) lds=%d" % LDS_BYTES)
out.append('.amdgcn_target "amdgcn-amd-amdhsa--gfx950"')
out.append(".text")
out.append(".globl %s" % KNAME)
out.append(".p2align 8")
out.append(".type %s,@function" % KNAME)
lab(KNAME)
e("s_cmp_ge_u32 s2, 256")
e("s_cbranch_scc1 L_end")
e("s_load_dwordx4 s[4:7], s[0:1], 0")
e("s_load_dwordx4 s[8:11], s[0:1], 16")
e("s_load_dwordx4 s[12:15], s[0:1], 32")
e("v_lshrrev_b32 v1, 6, v0")
e("v_and_b32 v0, 63, v0")
if STAMP:
    e("s_memrealtime s[98:99]")
    e("s_waitcnt lgkmcnt(0)")
    e("v_writelane_b32 v111, s98, 46")
e("s_and_b32 s47, s2, 7")
e("v_readfirstlane_b32 s%d, v1" % S_WAVE)
if CODEPF:
    e("s_getpc_b64 s[52:53]")
    lab("L_pc")
    e("s_cmp_ge_u32 s%d, 4" % S_WAVE)
    e("s_cbranch_scc1 L_nocpf")
    e("s_sub_u32 s52, s52, L_pc-%s" % KNAME)
    e("s_subb_u32 s53, s53, 0")
    e("s_lshl_b32 s54, s%d, 13" % S_WAVE)
    e("v_lshlrev_b32 v16, 7, v0")
    e("v_add_u32 v16, s54, v16")
    e("v_min_u32 v16, L_end-%s, v16" % KNAME)
    e("global_load_dword v100, v16, s[52:53]")
    lab("L_nocpf")
e("s_lshr_b32 s48, s2, 3")
e("s_lshr_b32 s%d, s47, 1" % S_KQ)
e("s_and_b32 s49, s47, 1")
e("s_lshl_b32 s49, s49, 3")
e("s_and_b32 s%d, s48, 7" % S_ROT2)
e("s_add_u32 s%d, s49, s%d" % (S_MT, S_ROT2))
e("s_lshr_b32 s%d, s48, 3" % S_NQ)
e("s_lshl_b32 s%d, s%d, 2" % (S_FS, S_KQ))
e("s_add_u32 s%d, s%d, s%d" % (S_FS, S_FS, S_NQ))
if ROTM == 1:
    e("s_add_u32 s%d, s%d, s%d" % (S_ROT1, S_NQ, S_ROT2))
    e("s_mul_i32 s47, s%d, 0x5556" % S_ROT1)
    e("s_lshr_b32 s47, s47, 16")
    e("s_mul_i32 s47, s47, 3")
    e("s_sub_u32 s%d, s%d, s47" % (S_ROT1, S_ROT1))
    e("s_mul_i32 s%d, s%d, 3" % (S_ROT1, S_ROT1))
elif ROTM == 0:
    e("s_mov_b32 s%d, 0" % S_ROT1)
elif ROTM == 2:
    e("s_add_u32 s%d, s%d, s%d" % (S_ROT1, S_NQ, S_ROT2))
    e("s_and_b32 s%d, s%d, 1" % (S_ROT1, S_ROT1))
    e("s_lshl_b32 s%d, s%d, 2" % (S_ROT1, S_ROT1))
e("s_lshl_b32 s47, s%d, 2" % S_MT)
e("s_add_u32 s47, s47, s%d" % S_KQ)
e("s_lshl_b32 s47, s47, 2")
e("s_add_u32 s47, s47, s%d" % S_NQ)
e("s_lshl_b32 s47, s47, 7")
e("s_add_u32 s%d, s47, %d" % (S_FLG, FLAGOFF))
e("v_lshlrev_b32 v%d, 4, v0" % V_L16)
for (base, p, n) in ((16, 4, X_BYTES), (20, 6, W_BYTES), (24, 8, W_BYTES), (28, 10, OUT_BYTES), (32, 12, 256), (36, 14, WS_BYTES)):
    e("s_mov_b32 s%d, %d" % (base + 2, n))
    e("s_mov_b32 s%d, 0x20000" % (base + 3))
S_LW = 50
VXE, VXO, VW1, VW2 = 2, 3, 32, 41
e("s_sub_u32 s%d, s%d, 4" % (S_LW, S_WAVE))
e("v_lshrrev_b32 v23, 3, v0")
e("v_and_b32 v24, 7, v0")
e("v_lshrrev_b32 v25, 4, v0")
e("v_xor_b32 v26, v24, v25")
e("v_xor_b32 v27, 4, v26")
e("v_mul_u32_u24 v23, 1152, v23")
e("v_lshl_add_u32 v%d, v26, 4, v23" % VXE)
e("v_lshl_add_u32 v%d, v27, 4, v23" % VXO)
e("s_mov_b32 s52, 0x71c71c8")
e("s_mov_b32 s53, 0xe38e38f")
e("s_mov_b32 s54, 9216")
for q in range(9):
    e("v_add_u32 v23, %d, v0" % (q * 64))
    e("v_mul_hi_u32 v24, v23, s52")
    e("v_mul_u32_u24 v25, 36, v24")
    e("v_sub_u32 v25, v23, v25")
    e("v_lshrrev_b32 v26, 2, v24")
    e("v_and_b32 v26, 2, v26")
    e("v_xor_b32 v25, v25, v26")
    e("v_mul_lo_u32 v24, v24, s54")
    e("v_lshl_add_u32 v%d, v25, 4, v24" % (VW1 + q))
S_XB, S_WB_, S_KX, S_KW, S_LX, S_LWW = 55, 56, 57, 58, 59, 60
e("s_mul_i32 s%d, s%d, 147456" % (S_XB, S_MT))
e("s_mul_i32 s52, s%d, %d" % (S_LW, 32 * 1152))
e("s_add_u32 s%d, s%d, s52" % (S_XB, S_XB))
e("s_mul_i32 s%d, s%d, 576" % (S_WB_, S_FS))
e("s_mul_i32 s52, s%d, %d" % (S_LW, 16 * 9216))
e("s_add_u32 s%d, s%d, s52" % (S_WB_, S_WB_))
e("s_lshl_b32 s%d, s%d, 7" % (S_KX, S_ROT1))
e("s_mul_i32 s%d, s%d, %d" % (S_KW, S_ROT1, 64 * 9216))
e("s_lshl_b32 s%d, s%d, 12" % (S_LX, S_LW))
e("s_mul_i32 s%d, s%d, 9216" % (S_LWW, S_LW))

e("s_waitcnt lgkmcnt(0)")
if WSOFF:
    e("s_add_u32 s14, s14, %d" % WSOFF)
    e("s_addc_u32 s15, s15, 0")
for (base, p, n) in ((16, 4, X_BYTES), (20, 6, W_BYTES), (24, 8, W_BYTES), (28, 10, OUT_BYTES), (32, 12, 256), (36, 14, WS_BYTES)):
    e("s_mov_b32 s%d, s%d" % (base, p))
    e("s_and_b32 s%d, s%d, 0xffff" % (base + 1, p + 1))
for x_ in stamp_ins(0): e(x_)
e("s_cmp_ge_u32 s%d, 4" % S_WAVE)
e("s_cbranch_scc0 L_compute")
out.append("@@COMPUTE@@")
lab("L_compute")

S_MH, S_FH = 50, 51
e("s_lshr_b32 s%d, s%d, 1" % (S_MH, S_WAVE))
e("s_and_b32 s%d, s%d, 1" % (S_FH, S_WAVE))
e("v_lshrrev_b32 v11, 4, v0")
e("v_bfe_u32 v12, v0, 2, 2")
e("v_and_b32 v13, 3, v0")
e("v_and_b32 v14, 1, v11")
e("v_and_b32 v15, 15, v0")
e("v_lshl_add_u32 v16, v11, 3, v12")
e("v_mul_u32_u24 v16, 576, v16")
e("v_lshl_add_u32 v16, v13, 3, v16")
e("v_lshlrev_b32 v17, 5, v14")
e("s_mul_i32 s52, s%d, 320" % S_FH)
e("s_add_u32 s52, s52, %d" % P1_W)
e("v_add_u32 v18, s52, v16")
e("v_add_u32 v%d, v18, v17" % V_TRE)
e("v_sub_u32 v%d, v18, v17" % V_TRO)
e("s_lshl_b32 s52, s%d, 5" % S_FH)
e("s_add_u32 s52, s52, %d" % (P1_W + 256))
e("s_lshl_b32 s53, s%d, 1" % S_FH)
e("s_sub_u32 s53, 1, s53")
e("v_mul_lo_u32 v18, v17, s53")
e("v_add3_u32 v%d, v16, v18, s52" % V_TR8)
e("v_lshrrev_b32 v17, 1, v15")
e("v_xor_b32 v18, v11, v17")
e("v_xor_b32 v19, 4, v18")
e("s_lshl_b32 s52, s%d, 13" % S_MH)
e("s_add_u32 s52, s52, %d" % P1_X)
e("v_lshlrev_b32 v20, 7, v15")
e("v_add_u32 v20, s52, v20")
e("v_lshl_add_u32 v%d, v18, 4, v20" % V_X0)
e("v_lshl_add_u32 v%d, v19, 4, v20" % V_X1)
e("v_lshl_add_u32 v16, v11, 2, v12")
e("v_mul_u32_u24 v16, 288, v16")
e("v_lshl_add_u32 v16, v13, 3, v16")
e("s_mul_i32 s52, s%d, %d" % (S_FH, P2_BS))
e("s_add_u32 s52, s52, %d" % P2_B)
e("v_add_u32 v%d, s52, v16" % V_T2)
e("s_lshl_b32 s52, s%d, 12" % S_MH)
e("s_mul_i32 s53, s%d, %d" % (S_FH, P2_AS))
e("s_add_u32 s52, s52, s53")
e("s_add_u32 s52, s52, %d" % P2_A)
e("s_lshl_b32 s53, s%d, 11" % S_FH)
e("s_add_u32 s54, s52, s53")
e("v_add_u32 v%d, s54, v%d" % (V_HLO, V_L16))
e("s_sub_u32 s54, s52, s53")
e("s_add_u32 s54, s54, 2048")
e("v_add_u32 v%d, s54, v%d" % (V_HHI, V_L16))
e("s_cmp_lg_u32 s%d, 0" % S_WAVE)
e("s_cbranch_scc1 L_noinit")
e("v_lshlrev_b32 v16, 2, v0")
e("v_mov_b32 v17, 0")
e("v_mov_b32 v18, 1")
e("s_mov_b64 exec, 0xffff")
e("buffer_store_dword v17, v16, %s, s%d offen sc1" % (sWS, S_FLG))
e("s_waitcnt vmcnt(0)")
e("s_mov_b64 exec, 1")
e("s_lshl_b32 s52, s%d, 4" % S_MT)
e("buffer_atomic_add v18, v17, %s, s52 offen sc1" % sDBG)
e("s_mov_b64 exec, -1")
lab("L_noinit")
for i in range(144):
    e("v_mov_b32 v%d, 0" % (ACC + i))

if PF1:
    e("v_and_b32 v16, 31, v0")
    e("v_mul_u32_u24 v16, 1152, v16")
    e("v_lshrrev_b32 v17, 5, v0")
    e("v_lshl_add_u32 v16, v17, 7, v16")
    e("s_mul_i32 s52, s%d, 147456" % S_MT)
    e("s_mul_i32 s53, s%d, %d" % (S_NQ, 32 * 1152))
    e("s_add_u32 s52, s52, s53")
    e("s_lshl_b32 s53, s%d, 8" % S_WAVE)
    e("s_add_u32 s53, s53, 256")
    e("s_min_u32 s53, s53, 896")
    e("s_add_u32 s52, s52, s53")
    e("buffer_load_dword v100, v16, %s, s52 offen" % sX)
    e("s_mov_b32 s52, 0x2aaaaaab")
    e("v_mul_hi_u32 v16, v0, s52")
    e("v_mul_u32_u24 v17, 6, v16")
    e("v_sub_u32 v17, v0, v17")
    e("v_lshlrev_b32 v17, 7, v17")
    e("v_min_u32 v17, 572, v17")
    e("v_min_u32 v16, 7, v16")
    e("s_mov_b32 s52, 9216")
    e("v_mul_lo_u32 v16, v16, s52")
    e("v_add_u32 v16, v16, v17")
    e("s_mul_i32 s52, s%d, 576" % S_FS)
    e("s_mul_i32 s53, s%d, %d" % (S_ROT2, 8 * 9216))
    e("s_add_u32 s52, s52, s53")
    e("s_add_u32 s53, s%d, 2" % S_WAVE)
    e("s_mul_i32 s53, s53, %d" % (64 * 9216))
    e("s_add_u32 s53, s52, s53")
    e("buffer_load_dword v101, v16, %s, s53 offen" % sW1)
    e("s_add_u32 s53, s%d, 6" % S_WAVE)
    e("s_min_u32 s53, s53, 8")
    e("s_mul_i32 s53, s53, %d" % (64 * 9216))
    e("s_add_u32 s53, s52, s53")
    e("buffer_load_dword v102, v16, %s, s53 offen" % sW1)

class Seq:
    def __init__(self): self.items = []
    def i(self, t): self.items.append(('i', t))
    def lds(self, t, tag): self.items.append(('lds', t, tag))
    def wait(self, tags, key): self.items.append(('wait', tags, key))
    def drain(self, t): self.items.append(('drain', t))

def w_reads_p1(t, ks, step):
    base = V_TR8 if t == 8 else (V_TRE if t % 2 == 0 else V_TRO)
    toff = 0 if t == 8 else t * 32
    r = []
    for h in range(2):
        r.append(("ds_read_b64_tr_b16 %s, v%d offset:%d" % (vr(wb(t) + 2 * h, 2), base, ks * 18432 + h * 2304 + toff), ('W', step, t)))
    return r
def x_reads_p1(ks, step):
    base = V_X0 if ks == 0 else V_X1
    return [("ds_read_b128 %s, v%d offset:%d" % (vr(xb(step & 1, mi), 4), base, mi * 2048), ('X', step)) for mi in range(4)]
def w_reads_p2(t, step):
    return [("ds_read_b64_tr_b16 %s, v%d offset:%d" % (vr(wb(t) + 2 * h, 2), V_T2, h * 4608 + t * 32), ('W', step, t)) for h in range(2)]
def x_reads_p2(step):
    r = []
    for mi in range(4):
        base = V_HLO if mi < 2 else V_HHI
        r.append(("ds_read_b128 %s, v%d offset:%d" % (vr(xb(step & 1, mi), 4), base, (mi & 1) * 1024), ('X', step)))
    return r

BAR_T = 2

def kstep(sq, keyp, step, carry, wnext, xnext, barrier=None, czero=False):
    pre = []
    if barrier is not None and PREADV:
        ib = barrier.index("s_barrier")
        extra = [b for b in barrier[ib + 1:] if b.startswith("s_memrealtime") or b.startswith("s_memtime") or b.startswith("v_writelane") or b.startswith("s_waitcnt")]
        pre = [b for b in barrier[ib + 1:] if b not in extra]
        barrier = barrier[:ib + 1] + extra
    q = list(carry)
    held = []
    blocked = barrier is not None
    if not blocked and xnext:
        pass
    for t in range(9):
        tags = [('W', step, t)] + ([('X', step)] if t == 0 else [])
        sq.wait(tags, (keyp, t))
        for mi in range(4):
            c = "0" if czero else vr(acc(t, mi), 4)
            sq.i("v_mfma_f32_16x16x32_bf16 %s, %s, %s, %s" % (vr(acc(t, mi), 4), vr(wb(t), 4), vr(xb(step & 1, mi), 4), c))
            if q and not (t == 8 and mi == 3):
                txt, tag = q.pop(0)
                sq.lds(txt, tag)
            elif pre:
                sq.i(pre.pop(0))
                while pre and pre[0].startswith("s_"): sq.i(pre.pop(0))
        new = wnext(t) if wnext else []
        if blocked:
            held += new
        else:
            q += new
        if t == (3 if barrier is None else BAR_T) and xnext and barrier is None:
            q += xnext
        if barrier is not None and t == BAR_T:
            assert not q, "carry not drained before barrier"
            assert not pre
            sq.drain("s_waitcnt lgkmcnt(0)")
            for b in barrier: sq.i(b)
            blocked = False
            q += (xnext or []) + held
            held = []
    return q

def resolve(seqs):
    issued = []
    res = {}
    for sq in seqs:
        for it in sq.items:
            if it[0] == 'lds':
                issued.append(it[2])
            elif it[0] == 'drain':
                issued = []
            elif it[0] == 'wait':
                tags = it[1]
                last = -1
                for idx, tg in enumerate(issued):
                    if tg in tags: last = idx
                n = 15 if last < 0 else min(15, len(issued) - 1 - last)
                res[it[2]] = min(res.get(it[2], 15), n)
    return res

def emit(sq, res):
    for it in sq.items:
        if it[0] in ('i', 'drain'): e(it[1])
        elif it[0] == 'lds': e(it[1])
        else: e("s_waitcnt lgkmcnt(%d)" % res[it[2]])

NBAR = {'c': 0}
def cbar(): NBAR['c'] += 1

S_SLOT, S_DELTA, S_CNT = 55, 56, 57
adv1 = ["s_barrier",
        "s_add_u32 s%d, s%d, 1" % (S_SLOT, S_SLOT),
        "s_cmp_eq_u32 s%d, 3" % S_SLOT,
        "s_cselect_b32 s%d, s71, s70" % S_DELTA,
        "s_cselect_b32 s%d, 0, s%d" % (S_SLOT, S_SLOT)] + \
       ["v_add_u32 v%d, s%d, v%d" % (r, S_DELTA, r) for r in (V_TRE, V_TRO, V_TR8, V_X0, V_X1)]

def p1_stage(j, keyp, carry, last):
    sq = Seq()
    s0, s1 = 2 * j, 2 * j + 1
    c = kstep(sq, (keyp, 0), s0, carry, lambda t: w_reads_p1(t, 1, s1), x_reads_p1(1, s1))
    if not last:
        c = kstep(sq, (keyp, 1), s1, c, lambda t: w_reads_p1(t, 0, s1 + 1), x_reads_p1(0, s1 + 1), barrier=adv1)
    else:
        c = kstep(sq, (keyp, 1), s1, c, None, None, barrier=["s_barrier"])
    return sq, c

pro = Seq()
pro.i("s_mov_b32 s%d, 0" % S_SLOT)
pro.i("s_mov_b32 s%d, 8" % S_CNT)
pro.i("s_mov_b32 s70, %d" % P1_SLOT)
pro.i("s_mov_b32 s71, %d" % ((-2 * P1_SLOT) & 0xffffffff))
pro.i("s_mov_b32 s72, %d" % (2 * P2_AS))
pro.i("s_mov_b32 s73, %d" % ((-7 * P2_AS) & 0xffffffff))
pro.i("s_mov_b32 s74, %d" % (2 * P2_BS))
pro.i("s_mov_b32 s75, %d" % ((-7 * P2_BS) & 0xffffffff))
for x_ in stamp_ins(45): pro.i(x_)
pro.i("s_barrier")
for x_ in stamp_ins(1): pro.i(x_)
for (txt, tag) in x_reads_p1(0, 0): pro.lds(txt, tag)
for t in range(8):
    for (txt, tag) in w_reads_p1(t, 0, 0): pro.lds(txt, tag)
carry0 = w_reads_p1(8, 0, 0)
seqs = [pro]
c = carry0
for j in range(8):
    sq, c = p1_stage(j, 'P1L', c, False)
    assert [x[0] for x in c] == [x[0] for x in carry0], (c, carry0)
    seqs.append(sq)
sq_last, c = p1_stage(8, 'P1T', c, True)
assert not c
seqs.append(sq_last)
res = resolve(seqs)
emit(pro, res)
lab("L_p1_loop")
emit(seqs[1], res)
e("s_sub_u32 s%d, s%d, 1" % (S_CNT, S_CNT))
e("s_cmp_lg_u32 s%d, 0" % S_CNT)
e("s_cbranch_scc1 L_p1_loop")
emit(sq_last, res)
NBAR['c'] += 1 + 8 + 1
for x_ in stamp_ins(2): e(x_)

S_SO = 60
S_GB = 65
for p in range(5):
    if p < 4:
        e("s_mul_i32 s52, s%d, 5" % S_FH)
        e("s_add_u32 s52, s52, %d" % (p + 9))
    else:
        e("s_mov_b32 s52, %d" % (4 + 9))
    e("s_sub_u32 s52, s52, s%d" % S_ROT2)
    e("s_cmp_ge_u32 s52, 9")
    e("s_cselect_b32 s53, 9, 0")
    e("s_sub_u32 s52, s52, s53")
    e("s_lshl_b32 s52, s52, 13")
    e("s_lshl_b32 s53, s%d, 12" % S_MH)
    e("s_add_u32 s%d, s52, s53" % (S_SO + p))
e("s_lshl_b32 s52, s%d, 3" % S_FH)
e("s_add_u32 s%d, s%d, s52" % (S_SO + 4, S_SO + 4))
e("s_lshl_b32 s52, s%d, 4" % S_MT)
e("s_add_u32 s52, s52, s%d" % S_FS)
e("s_mul_i32 s%d, s52, %d" % (S_GB, HBLK))
e("s_mov_b32 s66, 0xbfb8aa3b")
e("s_mov_b32 s67, 0xbfb8aa3b")
e("s_mov_b32 s68, 1.0")
e("s_mov_b32 s69, 1.0")

def silu_group(regs, T, P):
    n = len(regs)
    for k, a in enumerate(regs):
        for hh in range(2):
            e("v_pk_mul_f32 %s, %s, s[66:67]" % (vr(T + 4 * k + 2 * hh, 2), vr(a + 2 * hh, 2)))
    for k in range(4 * n):
        e("v_exp_f32 v%d, v%d" % (T + k, T + k))
    for k in range(2 * n):
        e("v_pk_add_f32 %s, %s, s[68:69]" % (vr(T + 2 * k, 2), vr(T + 2 * k, 2)))
    for k in range(4 * n):
        e("v_rcp_f32 v%d, v%d" % (T + k, T + k))
    for k, a in enumerate(regs):
        for hh in range(2):
            e("v_pk_mul_f32 %s, %s, %s" % (vr(T + 4 * k + 2 * hh, 2), vr(a + 2 * hh, 2), vr(T + 4 * k + 2 * hh, 2)))
    for k in range(2 * n):
        e("v_cvt_pk_bf16_f32 v%d, v%d, v%d" % (P + k, T + 2 * k, T + 2 * k + 1))

grp = 0
for p in range(5):
    e("s_add_u32 s53, s%d, %d" % (S_SO + p, P2_A))
    e("v_add_u32 v1, s53, v%d" % V_L16)
    e("s_add_u32 s52, s%d, s%d" % (S_GB, S_SO + p))
    for mi in range(4):
        T = 16 + (grp % 3) * 8
        P = 48 + (grp % 4) * 4
        grp += 1
        if p < 4:
            silu_group([acc(2 * p, mi), acc(2 * p + 1, mi)], T, P)
            e("ds_write_b128 v1, %s offset:%d" % (vr(P, 4), mi * 1024))
            if not NOHST: e("buffer_store_dwordx4 %s, v%d, %s, s52 offen offset:%d%s" % (vr(P, 4), V_L16, sWS, mi * 1024, " sc1" if HSC1 else ""))
        else:
            silu_group([acc(8, mi)], T, P)
            e("ds_write_b64 v1, %s offset:%d" % (vr(P, 2), mi * 1024))
            e("buffer_store_dwordx2 %s, v%d, %s, s52 offen offset:%d%s" % (vr(P, 2), V_L16, sWS, mi * 1024, " sc1" if HSC1 else ""))

if MODE == 'p1':
    e("s_waitcnt vmcnt(0) lgkmcnt(0)")
    e("s_branch L_end")
else:
    S_DA, S_DB = 58, 59
    def adv2(first):
        l = []
        if first: l.append("s_waitcnt vmcnt(0)")
        if first: l += stamp_ins(5)
        l += ["s_barrier"] + (stamp_ins(6) if first else []) + [
              "s_add_u32 s%d, s%d, 2" % (S_SLOT, S_SLOT),
              "s_cmp_ge_u32 s%d, 9" % S_SLOT,
              "s_cselect_b32 s%d, s73, s72" % S_DA,
              "s_cselect_b32 s%d, s75, s74" % S_DB,
              "s_cselect_b32 s52, 9, 0",
              "s_sub_u32 s%d, s%d, s52" % (S_SLOT, S_SLOT),
              "v_add_u32 v%d, s%d, v%d" % (V_T2, S_DB, V_T2),
              "v_add_u32 v%d, s%d, v%d" % (V_HLO, S_DA, V_HLO),
              "v_add_u32 v%d, s%d, v%d" % (V_HHI, S_DA, V_HHI)]
        return l
    def p2_stage(t, keyp, carry):
        sq = Seq()
        if t < 17:
            c = kstep(sq, keyp, t, carry, lambda tt: w_reads_p2(tt, t + 1), x_reads_p2(t + 1), barrier=adv2(t == 0), czero=(t == 0))
        else:
            step = t
            def mf(tt, mi):
                sq.i("v_mfma_f32_16x16x32_bf16 %s, %s, %s, %s" % (vr(acc(tt, mi), 4), vr(wb(tt), 4), vr(xb(step & 1, mi), 4), vr(acc(tt, mi), 4)))
            q = list(carry)
            for tt in range(9):
                sq.wait([('W', step, tt)] + ([('X', step)] if tt == 0 else []), (keyp, tt))
                for mi in (2, 3):
                    mf(tt, mi)
                    if q:
                        txt, tag = q.pop(0); sq.lds(txt, tag)
            wr = ["ds_write_b128 v1, %s offset:%d" % (vr(acc(tt, 2 + m), 4), (tt * 2 + m) * 1024) for tt in range(9) for m in range(2)]
            rd = ["ds_read_b128 %s, v2 offset:%d" % (vr(acc(tt, 2 + m), 4), (tt * 2 + m) * 1024) for tt in range(9) for m in range(2)]
            k = 0
            for tt in range(9):
                for mi in (0, 1):
                    mf(tt, mi)
                    if k < 9:
                        sq.lds(wr[2 * k], ('WR',)); sq.lds(wr[2 * k + 1], ('WR',))
                    else:
                        sq.lds(rd[2 * (k - 9)], ('RD',)); sq.lds(rd[2 * (k - 9) + 1], ('RD',))
                    k += 1
                    if k == 9:
                        sq.drain("s_waitcnt lgkmcnt(0)")
                        sq.i("s_barrier")
            c = []
        return sq, c
    pro = Seq()
    pro.i("s_mov_b32 s%d, s%d" % (S_SLOT, S_FH))
    pro.i("s_mov_b32 s%d, 8" % S_CNT)
    pro.drain("s_waitcnt lgkmcnt(0)")
    for x_ in stamp_ins(3): pro.i(x_)
    pro.i("s_barrier")
    for x_ in stamp_ins(4): pro.i(x_)
    for (txt, tag) in x_reads_p2(0): pro.lds(txt, tag)
    for t in range(8):
        for (txt, tag) in w_reads_p2(t, 0): pro.lds(txt, tag)
    carry0 = w_reads_p2(8, 0)
    seqs = [pro]
    c = carry0
    for t in range(18):
        keyp = 'P2F' if t == 0 else ('P2T' if t == 17 else ('P2L', t & 1))
        sq, c = p2_stage(t, keyp, c)
        if t < 17: assert [x[0] for x in c] == [x[0] for x in carry0]
        seqs.append(sq)
    assert not c
    res = resolve(seqs)
    emit(pro, res)
    emit(seqs[1], res)
    lab("L_p2_loop")
    emit(seqs[2], res)
    emit(seqs[3], res)
    e("s_sub_u32 s%d, s%d, 1" % (S_CNT, S_CNT))
    e("s_cmp_lg_u32 s%d, 0" % S_CNT)
    e("s_cbranch_scc1 L_p2_loop")
    e("s_mul_i32 s52, s%d, %d" % (S_WAVE, PQ))
    e("s_cmp_eq_u32 s%d, 3" % S_WAVE)
    e("s_cselect_b32 s53, %d, 0" % (P2_A - 3 * PQ))
    e("s_add_u32 s52, s52, s53")
    e("v_add_u32 v1, s52, v%d" % V_L16)
    e("s_xor_b32 s54, s%d, 1" % S_WAVE)
    e("s_mul_i32 s52, s54, %d" % PQ)
    e("s_cmp_eq_u32 s54, 3")
    e("s_cselect_b32 s53, %d, 0" % (P2_A - 3 * PQ))
    e("s_add_u32 s52, s52, s53")
    e("v_add_u32 v2, s52, v%d" % V_L16)
    e("v_add_u32 v3, %d, v%d" % (R3_O, V_L16))
    emit(seqs[18], res)
    NBAR['c'] += 1 + 17 + 1
    for x_ in stamp_ins(8): e(x_)
    for t in range(9):
        for m in range(2):
            f = t * 2 + m
            e("s_waitcnt lgkmcnt(%d)" % min(15, 17 - f))
            if t == 8 and m == 0: e("s_nop 7")
            for k in range(2):
                e("v_pk_add_f32 %s, %s, %s" % (vr(acc(t, m) + 2 * k, 2), vr(acc(t, m) + 2 * k, 2), vr(acc(t, 2 + m) + 2 * k, 2)))
    e("s_cmp_eq_u32 s%d, s%d" % (S_WAVE, S_KQ))
    e("s_cbranch_scc1 L_p3_own")
    e("s_lshl_b32 s52, s%d, 2" % S_MT)
    e("s_add_u32 s52, s52, s%d" % S_NQ)
    e("s_lshl_b32 s52, s52, 2")
    e("s_add_u32 s52, s52, s%d" % S_WAVE)
    e("s_lshl_b32 s52, s52, 2")
    e("s_add_u32 s52, s52, s%d" % S_KQ)
    e("s_mul_i32 s52, s52, %d" % PQ)
    e("s_add_u32 s52, s52, %d" % PART)
    for t in range(9):
        for m in range(2):
            f = t * 2 + m
            if not PBF16:
                if f % 4 == 0 and f: e("s_add_u32 s52, s52, 4096")
                e("buffer_store_dwordx4 %s, v%d, %s, s52 offen offset:%d sc1" % (vr(acc(t, m), 4), V_L16, sWS, (f % 4) * 1024))
            else:
                d = acc(t, 2) + 2 * m
                e("v_cvt_pk_bf16_f32 v%d, v%d, v%d" % (d, acc(t, m), acc(t, m) + 1))
                e("v_cvt_pk_bf16_f32 v%d, v%d, v%d" % (d + 1, acc(t, m) + 2, acc(t, m) + 3))
                if m == 1:
                    if t % 4 == 0 and t: e("s_add_u32 s52, s52, 4096")
                    e("buffer_store_dwordx4 %s, v%d, %s, s52 offen offset:%d sc1" % (vr(acc(t, 2), 4), V_L16, sWS, (t % 4) * 1024))
    e("s_lshl_b32 s52, s%d, 2" % S_MT)
    e("s_add_u32 s52, s52, s%d" % S_WAVE)
    e("s_lshl_b32 s52, s52, 2")
    e("s_add_u32 s52, s52, s%d" % S_NQ)
    e("s_lshl_b32 s52, s52, 7")
    e("s_lshl_b32 s53, s%d, 2" % S_KQ)
    e("s_add_u32 s52, s52, s53")
    e("s_add_u32 s52, s52, %d" % (FLAGOFF + 16))
    e("v_mov_b32 v1, 0")
    e("v_mov_b32 v2, 1")
    e("s_barrier")
    e("s_waitcnt vmcnt(0)")
    for x_ in stamp_ins(9): e(x_)
    e("s_mov_b64 exec, 1")
    e("buffer_store_dword v2, v1, %s, s52 offen sc1" % sWS)
    e("s_mov_b64 exec, -1")
    e("s_branch L_tail")
    lab("L_p3_own")
    for t in range(9):
        for m in range(2):
            e("ds_write_b128 v3, %s offset:%d" % (vr(acc(t, m), 4), (t * 2 + m) * 1024))
    e("s_waitcnt lgkmcnt(0)")
    e("s_barrier")
    NBAR['c'] += 1
    e("s_branch L_tail")

out.append("@@LOADER@@")
lab("L_loader")
class VM:
    def __init__(self): self.ops = []
    def issue(self, need): self.ops.append(need)
    def before_barrier(self, b):
        last = -1
        for i, n in enumerate(self.ops):
            if n <= b: last = i
        if last >= 0:
            n = len(self.ops) - 1 - last
            e("s_waitcnt vmcnt(%d)" % min(n, 63))
            self.ops = self.ops[last + 1:]
    def copy(self):
        v = VM(); v.ops = list(self.ops); return v

vm = VM()
def p1_issue(j):
    slot = (j % 3) * P1_SLOT
    e("s_add_u32 s61, s%d, s%d" % (S_XB, S_KX))
    e("s_add_u32 s62, s%d, s%d" % (S_WB_, S_KW))
    for i4 in range(4):
        e("s_add_u32 m0, s%d, %d" % (S_LX, slot + P1_X + i4 * 1024))
        e("s_add_u32 s63, s61, %d" % (i4 * 9216))
        e("buffer_load_dwordx4 v%d, %s, s63 offen lds" % (VXE if i4 % 2 == 0 else VXO, sX))
        vm.issue(j)
    for q in range(9):
        e("s_add_u32 m0, s%d, %d" % (S_LWW, slot + P1_W + q * 1024))
        e("s_nop 0")
        e("buffer_load_dwordx4 v%d, %s, s62 offen lds" % (VW1 + q, sW1))
        vm.issue(j)
    e("s_add_u32 s%d, s%d, 128" % (S_KX, S_KX))
    e("s_add_u32 s%d, s%d, %d" % (S_KW, S_KW, 64 * 9216))
    e("s_cmp_eq_u32 s%d, 1152" % S_KX)
    e("s_cselect_b32 s%d, 0, s%d" % (S_KX, S_KX))
    e("s_cselect_b32 s%d, 0, s%d" % (S_KW, S_KW))

NBAR['l'] = 0
def lbar(b, v):
    v.before_barrier(b)
    if b == 0:
        for x_ in stamp_ins(43): e(x_)
    if 11 <= b <= 22:
        for x_ in stamp_ins(b + 40): e(x_)
    e("s_barrier")
    for x_ in stamp_ins(1 + b): e(x_)

for x_ in stamp_ins(44): e(x_)
p1_issue(0)
if STARTM == 0: p1_issue(1)
for x_ in stamp_ins(42): e(x_)
for q in range(9):
    e("v_add_u32 v23, %d, v0" % (q * 64))
    e("v_mul_hi_u32 v24, v23, s53")
    e("v_mul_u32_u24 v25, 18, v24")
    e("v_sub_u32 v25, v23, v25")
    e("v_mul_u32_u24 v24, 1152, v24")
    e("v_lshl_add_u32 v%d, v25, 4, v24" % (VW2 + q))
S_SIS = 70
S_SLB = 80
S_HB = 84
for o in range(9):
    e("s_add_u32 s52, s%d, %d" % (S_ROT2, o))
    e("s_cmp_ge_u32 s52, 9")
    e("s_cselect_b32 s53, 9, 0")
    e("s_sub_u32 s52, s52, s53")
    e("s_mul_i32 s%d, s52, %d" % (S_SIS + o, 32 * 1152))
for si in range(4):
    e("s_add_u32 s52, s%d, %d" % (S_NQ, si))
    e("s_and_b32 s52, s52, 3")
    e("s_lshl_b32 s53, s%d, 2" % S_KQ)
    e("s_add_u32 s52, s52, s53")
    e("s_mul_i32 s53, s52, %d" % (288 * 1152))
    e("s_mul_i32 s54, s%d, 288" % S_NQ)
    e("s_add_u32 s%d, s53, s54" % (S_SLB + si))
    if si:
        e("s_lshl_b32 s53, s%d, 4" % S_MT)
        e("s_add_u32 s53, s53, s52")
        e("s_mul_i32 s%d, s53, %d" % (S_HB + si - 1, HBLK))
if STARTM == 1:
    e("s_waitcnt vmcnt(6)")
    p1_issue(1)
lbar(0, vm)
p1_issue(2)
for j in range(1, 7):
    lbar(j, vm)
    p1_issue(j + 2)
    if PFW2 and 2 <= j <= 6:
        if j == 2:
            e("s_lshl_b32 s67, s%d, 2" % S_ROT2)
            e("s_add_u32 s67, s67, s%d" % S_NQ)
            e("s_mul_i32 s67, s67, 41472")
            e("s_mul_i32 s62, s%d, 1327104" % S_KQ)
            e("s_add_u32 s67, s67, s62")
            e("s_mul_i32 s62, s%d, 10368" % S_LW)
            e("s_add_u32 s67, s67, s62")
        for k in range(3 if j == 2 else 2):
            e("buffer_load_dwordx4 v[28:31], v%d, %s, s67 offen" % (V_L16, sW2))
            e("s_add_u32 s67, s67, 1024")
            vm.issue(1000)
lbar(7, vm)
for lw in range(1, 4):
    e("s_cmp_eq_u32 s%d, %d" % (S_LW, lw))
    e("s_cbranch_scc1 L_ld%d" % lw)

def need_of_step(s): return 10 + s // 2

def step_src(s):
    if s < 9: return 0, s
    i = s - 9
    return 1 + i % 3, i // 3
def issue_B(s, v):
    si, o = step_src(s)
    e("s_add_u32 s61, s%d, s%d" % (S_SLB + si, S_SIS + o))
    for q in range(9):
        e("s_mov_b32 m0, %d" % (P2_B + (s % 9) * P2_BS + q * 1024))
        e("s_nop 0")
        e("buffer_load_dwordx4 v%d, %s, s61 offen lds" % (VW2 + q, sW2))
        v.issue(need_of_step(s))
def issue_A(s, v):
    if NOA: return
    si, o = step_src(s)
    for half in range(2):
        e("s_mov_b32 m0, %d" % (P2_A + (s % 9) * P2_AS + half * 4096))
        e("s_add_u32 s61, s%d, %d" % (S_HB + si - 1, o * P2_AS + half * 4096))
        for q in range(4):
            e("buffer_load_dwordx4 v%d, %s, s61 offen offset:%d lds" % (V_L16, sWS, q * 1024))
            v.issue(need_of_step(s))

def poll_words(tag, srd, soff, lanes_mask_sreg_or_imm, thresh):
    e("s_mov_b32 s63, %d" % SPIN_MAX)
    lab("L_poll_%s" % tag)
    e("buffer_load_dword v24, v25, %s, %s offen sc1" % (srd, soff))
    e("s_waitcnt vmcnt(0)")
    e("v_cmp_le_u32 vcc, %d, v24" % thresh)
    e("s_sub_u32 s63, s63, 1")
    e("s_cmp_eq_u32 s63, 0")
    e("s_cbranch_scc1 L_polld_%s" % tag)
    e("s_and_b32 s64, vcc_lo, %s" % lanes_mask_sreg_or_imm)
    e("s_cmp_eq_u32 s64, %s" % lanes_mask_sreg_or_imm)
    e("s_cbranch_scc1 L_polld_%s" % tag)
    e("s_sleep 1")
    e("s_branch L_poll_%s" % tag)
    lab("L_polld_%s" % tag)

for lw in range(4):
    if lw: lab("L_ld%d" % lw)
    v = vm.copy()
    nb = 8
    for s in range(0, 5):
        if s % 4 == lw: issue_B(s, v)
    lbar(8, v); nb += 1
    for s in range(5, 9):
        if s % 4 == lw: issue_B(s, v)
    lbar(9, v); nb += 1
    if MODE == 'p1':
        e("s_waitcnt vmcnt(0)")
        e("s_branch L_end")
        NBAR['l'] = nb
        continue
    if lw == 0:
        e("v_and_b32 v25, 15, v0")
        e("v_lshlrev_b32 v25, 2, v25")
        e("s_lshl_b32 s62, s%d, 4" % S_MT)
        poll_words("init", sDBG, "s62", "1", 16)
        v.ops = []
        e("v_lshlrev_b32 v26, 7, v0")
        e("s_andn2_b32 s65, s%d, 0x180" % S_FLG)
        e("s_lshl_b32 s62, s%d, 2" % S_NQ)
        e("s_add_u32 s65, s65, s62")
        e("v_mov_b32 v27, 1")
    if lw in (1, 3):
        e("v_and_b32 v25, 15, v0")
        e("v_lshlrev_b32 v25, 2, v25")
    lbar(10, v); nb += 1
    polled = set()
    pend = []
    for t in range(17):
        lbar(11 + t, v); nb += 1
        if t == 0 and lw == 0:
            e("s_mov_b64 exec, 0xf")
            e("buffer_store_dword v27, v26, %s, s65 offen sc1" % sWS)
            e("s_mov_b64 exec, -1")
            v.issue(1000)
        for s_ in (2 * t + 9, 2 * t + 10):
            if s_ > 35: continue
            if lw == (0 if s_ % 2 == 0 else 2): issue_B(s_, v)
            if lw == (1 if s_ % 2 == 0 else 3):
                pend.append(s_)
        if lw in (1, 3) and t >= POLLT:
            if not polled:
                polled.add(1)
                e("s_lshl_b32 s61, 1, s%d" % S_NQ)
                e("s_xor_b32 s61, s61, 0xf")
                poll_words("a%d" % lw, sWS, "s%d" % S_FLG, "s61", 1)
                for x_ in stamp_ins(40): e(x_)
                v.ops = []
            for s_ in pend: issue_A(s_, v)
            pend = []
    lbar(28, v); nb += 1
    lbar(29, v); nb += 1
    NBAR['l'] = nb
    e("s_branch L_tail")

assert NBAR['c'] == NBAR['l'], NBAR

out.append("@@TAIL@@")
lab("L_tail")
TS = 1024 if PBF16 else 2048
e("v_and_b32 v25, 15, v0")
e("v_lshlrev_b32 v25, 2, v25")
e("s_lshl_b32 s52, s%d, 2" % S_MT)
e("s_add_u32 s52, s52, s%d" % S_NQ)
e("s_lshl_b32 s52, s52, 2")
e("s_add_u32 s52, s52, s%d" % S_KQ)
e("s_mul_i32 s52, s52, %d" % (4 * PQ))
e("s_add_u32 s52, s52, %d" % PART)
e("s_mul_i32 s53, s%d, %d" % (S_WAVE, TS))
e("s_add_u32 s52, s52, s53")
for k in range(3):
    e("s_add_u32 s54, s%d, %d" % (S_KQ, k + 1))
    e("s_and_b32 s54, s54, 3")
    e("s_mul_i32 s54, s54, %d" % PQ)
    e("s_add_u32 s%d, s52, s54" % (56 + k))
e("s_lshl_b32 s53, s%d, 11" % S_WAVE)
e("s_add_u32 s54, s53, %d" % R3_O)
e("v_add_u32 v1, s54, v%d" % V_L16)
e("v_and_b32 v2, 15, v0")
e("v_mul_u32_u24 v2, 1152, v2")
e("v_lshrrev_b32 v3, 4, v0")
e("v_lshl_add_u32 v2, v3, 3, v2")
e("s_lshl_b32 s54, s%d, 2" % S_MT)
e("s_add_u32 s54, s54, s%d" % S_KQ)
e("s_mul_i32 s54, s54, %d" % (32 * 1152))
e("s_mul_i32 s55, s%d, 288" % S_NQ)
e("s_add_u32 s59, s54, s55")
e("s_lshl_b32 s55, s%d, 5" % S_WAVE)
e("s_add_u32 s59, s59, s55")
e("s_lshl_b32 s61, 16, s%d" % S_KQ)
e("s_xor_b32 s61, s61, 0xf0")
def t_own(i):
    for m in range(2): e("ds_read_b128 %s, v1 offset:%d" % (vr(32 + i * 32 + 4 * m, 4), i * 16384 + m * 1024))
def t_load(i):
    b = 32 + i * 32 + 8
    for k in range(3):
        if i: e("s_add_u32 s%d, s%d, %d" % (56 + k, 56 + k, 8 * TS))
        if PBF16:
            e("buffer_load_dwordx4 %s, v%d, %s, s%d offen sc1" % (vr(b + 8 * k, 4), V_L16, sWS, 56 + k))
        else:
            for m in range(2):
                e("buffer_load_dwordx4 %s, v%d, %s, s%d offen offset:%d sc1" % (vr(b + 8 * k + 4 * m, 4), V_L16, sWS, 56 + k, m * 1024))
def t_fin(i):
    a = 32 + i * 32; b = a + 8
    for k in range(3):
        if PBF16:
            r = b + 8 * k
            for d in (3, 2, 1, 0):
                e("v_and_b32 v%d, 0xffff0000, v%d" % (r + 2 * d + 1, r + d))
                e("v_lshlrev_b32 v%d, 16, v%d" % (r + 2 * d, r + d))
        for hh in range(4):
            e("v_pk_add_f32 %s, %s, %s" % (vr(a + 2 * hh, 2), vr(a + 2 * hh, 2), vr(b + 8 * k + 2 * hh, 2)))
    for hh in range(4):
        e("v_cvt_pk_bf16_f32 v%d, v%d, v%d" % (b + hh, a + 2 * hh, a + 2 * hh + 1))
    if i: e("s_add_u32 s59, s59, 256")
    e("buffer_store_dwordx2 %s, v2, %s, s59 offen" % (vr(b, 2), sOUT))
    e("s_add_u32 s54, s59, %d" % (16 * 1152))
    e("buffer_store_dwordx2 %s, v2, %s, s54 offen" % (vr(b + 2, 2), sOUT))
t_own(0)
e("s_cmp_lg_u32 s%d, 0" % S_WAVE)
e("s_cbranch_scc1 L_tail_a")
t_own(1)
lab("L_tail_a")
poll_words("tail", sWS, "s%d" % S_FLG, "s61", 1)
for x_ in stamp_ins(41): e(x_)
t_load(0)
e("s_cmp_lg_u32 s%d, 0" % S_WAVE)
e("s_cbranch_scc1 L_tail_b")
t_load(1)
e("s_waitcnt vmcnt(0) lgkmcnt(0)")
t_fin(0)
t_fin(1)
e("s_branch L_tail2")
lab("L_tail_b")
e("s_waitcnt vmcnt(0) lgkmcnt(0)")
t_fin(0)
lab("L_tail2")
if STAMP and os.environ.get('DBGST'):
    for x_ in stamp_ins(50): e(x_)
    e("s_cmp_lg_u32 s2, 5")
    e("s_cbranch_scc1 L_end")
    e("s_cmp_lg_u32 s%d, 0" % S_WAVE)
    e("s_cbranch_scc1 L_end")
    e("v_readlane_b32 s52, v111, 46")
    e("v_mov_b32 v1, 0")
    for (w, st) in ((1, 0), (2, 1), (3, 2), (5, 3), (6, 6), (7, 8), (9, 41), (10, 50)):
        e("v_readlane_b32 s53, v111, %d" % st)
        e("s_nop 3")
        e("s_sub_u32 s53, s53, s52")
        e("v_mov_b32 v2, s53")
        e("s_mov_b64 exec, 1")
        e("buffer_store_dword v2, v1, %s, 0 offen offset:%d" % (sDBG, w * 4))
        e("s_mov_b64 exec, -1")
elif STAMP:
    for x_ in stamp_ins(50): e(x_)
    e("s_lshl_b32 s52, s2, 3")
    e("s_add_u32 s52, s52, s%d" % S_WAVE)
    e("s_lshl_b32 s52, s52, 9")
    e("s_add_u32 s52, s52, %d" % STOFF)
    e("v_lshlrev_b32 v1, 2, v0")
    e("buffer_store_dword v111, v1, %s, s52 offen" % sWS)
    e("buffer_store_dword v110, v1, %s, s52 offen offset:256" % sWS)
lab("L_end")
e("s_endpgm")
out.append('.section .rodata,"a"')
out.append(".p2align 6")
out.append(".amdhsa_kernel %s" % KNAME)
out.append("  .amdhsa_next_free_vgpr 256")
out.append("  .amdhsa_next_free_sgpr 100")
out.append("  .amdhsa_accum_offset 256")
out.append("  .amdhsa_group_segment_fixed_size 0")
out.append("  .amdhsa_kernarg_size 48")
out.append("  .amdhsa_user_sgpr_count 2")
out.append("  .amdhsa_user_sgpr_kernarg_segment_ptr 1")
out.append("  .amdhsa_system_sgpr_workgroup_id_x 1")
out.append(".end_amdhsa_kernel")
ic, il, it = out.index("@@COMPUTE@@"), out.index("@@LOADER@@"), out.index("@@TAIL@@")
out = out[:ic] + out[il + 1:it] + out[ic + 1:il] + out[it + 1:]
print("\n".join(out))
```
